```python
import torch

def _softmax(x, axis=-1):
    return torch.softmax(x, dim=axis)
def _gelu(x):
    return torch.nn.functional.gelu(x, approximate="tanh")
def _silu(x):
    return torch.nn.functional.silu(x)
def _sigmoid(x):
    return torch.sigmoid(x)
def _layernorm(x, axis=-1, eps=1e-5):
    m = x.mean(dim=axis, keepdim=True)
    v = x.var(dim=axis, keepdim=True, unbiased=False)
    return (x - m) / torch.sqrt(v + eps)
def _scatter_add(tgt, idx, src, axis=0):
    return tgt.clone().index_add_(axis, idx, src)
def _segment_sum(src, seg, n):
    out = torch.zeros((n,) + src.shape[1:], dtype=src.dtype)
    return out.index_add_(0, seg, src)
def _pad(x, pw):
    flat = tuple(v for pair in reversed(pw) for v in pair)
    return torch.nn.functional.pad(x, flat)

kernel_name = 'gated_mix__sliding_block_cached__swiglu_ffn__decode'

def setup_inputs():

    _w = (lambda a: (lambda t: t.to(torch.bfloat16) if t.is_floating_point() else t)(torch.as_tensor(a)))
    def _A_setup():
        B, Sq, D = 2, 1, 512
        Hq, Hkv, Sk, Dh = 32, 8, 32768, 128
        assert Hq % Hkv == 0, (Hq, Hkv)
        return {
            "x": _w((lambda *s: torch.randn(*s, dtype=torch.bfloat16) * 0.05)(B, Sq, D)),
            "k_cache": _w((lambda *s: torch.randn(*s, dtype=torch.bfloat16) * 6.4)(B, Hkv, Sk, Dh)),
            "v_cache": _w((lambda *s: torch.randn(*s, dtype=torch.bfloat16) * 0.2)(B, Hkv, Sk, Dh)),
            "wq": _w((lambda *s: torch.randn(*s, dtype=torch.bfloat16) * 6.4)(D, Hq * Dh) * (D ** -0.5)),
            "wo": _w((lambda *s: torch.randn(*s, dtype=torch.bfloat16) * 0.2)(Hq * Dh, D) * ((Hq * Dh) ** -0.5)),
        }
    _A_in = _A_setup()

    def _B_setup():
        B, S, D, F = 2, 1, 512, 1792
        return {
            "x": _w((lambda *s: torch.randn(*s, dtype=torch.bfloat16) * 0.05)(B, S, D)),
            "w_gate": _w((lambda *s: torch.randn(*s, dtype=torch.bfloat16) * 0.05)(D, F)),
            "w_up": _w((lambda *s: torch.randn(*s, dtype=torch.bfloat16) * 0.05)(D, F)),
            "w_down": _w((lambda *s: torch.randn(*s, dtype=torch.bfloat16) * 0.05)(F, D)),
        }
    _B_in = _B_setup()

    return {
        "A_x": _A_in["x"],
        "A_k_cache": _A_in["k_cache"],
        "A_v_cache": _A_in["v_cache"],
        "A_wq": _A_in["wq"],
        "A_wo": _A_in["wo"],
        "B_x": _B_in["x"],
        "B_w_gate": _B_in["w_gate"],
        "B_w_up": _B_in["w_up"],
        "B_w_down": _B_in["w_down"],
        "gate_w": _w((lambda *s: torch.randn(*s, dtype=torch.bfloat16) * 0.05)(512) * 16.0),
    }

def reference(A_x, A_k_cache, A_v_cache, A_wq, A_wo, B_x, B_w_gate, B_w_up, B_w_down, gate_w):
    def _A_ref(x, k_cache, v_cache, wq, wo):
        B, Sq, D = x.shape
        Hq, Dh = 32, 128
        Hkv, Sk = k_cache.shape[1], k_cache.shape[2]
        W = min(4096, max(256, Sk // 4))
        rep = Hq // Hkv
        q = (lambda x, *d: x.permute(*d))((x @ wq).reshape(B, Sq, Hq, Dh), 0, 2, 1, 3)
        k = (lambda x, n, axis: torch.repeat_interleave(x, n, dim=axis))(k_cache[:, :, Sk - W:, :], rep, axis=1)
        v = (lambda x, n, axis: torch.repeat_interleave(x, n, dim=axis))(v_cache[:, :, Sk - W:, :], rep, axis=1)
        scores = torch.einsum("bhqd,bhkd->bhqk", q, k) * (Dh ** -0.5)
        p = _softmax(scores, axis=-1)
        o = torch.einsum("bhqk,bhkd->bhqd", p, v)
        return (lambda x, *d: x.permute(*d))(o, 0, 2, 1, 3).reshape(B, Sq, Hq * Dh) @ wo

    def _B_ref(x, w_gate, w_up, w_down):
        g = _silu(x @ w_gate)
        u = x @ w_up
        return (g * u) @ w_down

    x = A_x
    g = _sigmoid((x * gate_w).sum(-1, keepdims=True))
    a = _A_ref(x, A_k_cache, A_v_cache, A_wq, A_wo)
    b = _B_ref(x, B_w_gate, B_w_up, B_w_down)
    return g * a + (1 - g) * b
```

```python
import re

TRANS = ("v_exp_f32", "v_log_f32", "v_rcp_f32", "v_rsq_f32", "v_sqrt_f32", "v_sin_f32", "v_cos_f32")

def _regs(tok):
    tok = tok.strip()
    out = set()
    for m in re.finditer(r"\b([vsa])\[(\d+):(\d+)\]", tok):
        for i in range(int(m.group(2)), int(m.group(3)) + 1):
            out.add(f"{m.group(1)}{i}")
    t2 = re.sub(r"\b[vsa]\[\d+:\d+\]", "", tok)
    for m in re.finditer(r"\b([vsa])(\d+)\b", t2):
        out.add(f"{m.group(1)}{m.group(2)}")
    if re.search(r"\bvcc\b", tok): out.add("vcc")
    if re.search(r"\bexec\b", tok): out.add("exec")
    if re.search(r"\bm0\b", tok): out.add("m0")
    return out

class Asm:
    def __init__(self):
        self.lines = []
        self.hist = []
        self.nops = 0

    def raw(self, s):
        self.lines.append(s)

    def _age(self, n):
        for h in self.hist:
            h["age"] += n
        self.hist = [h for h in self.hist if h["age"] < 24]

    def _nop(self, n):
        while n > 0:
            k = min(n, 16)
            self.lines.append(f"  s_nop {k-1}")
            self._age(k)
            self.nops += k
            n -= k

    def flush(self):
        need = 0
        for h in self.hist:
            if h["kind"] == "mfma": need = max(need, h["passes"] * 1 + 4 + 4 - h["age"])
            elif h["kind"] in ("valu", "trans"):
                if h["dst"] == {"vcc"}: need = max(need, 1 - h["age"])
                else: need = max(need, (5 if h["wsg"] else 2) - h["age"])
            elif h["kind"] == "store": need = max(need, 2 - h["age"])
        self._nop(max(need, 0))

    def label(self, name):
        self.flush()
        self.lines.append(f"{name}:")

    def __call__(self, text):
        for ln in text.strip().split("\n"):
            ln = ln.split(";")[0].strip()
            if ln:
                self.ins(ln)

    def ins(self, ln):
        op, _, rest = ln.partition(" ")
        ops = [o.strip() for o in re.split(r",(?![^\[]*\])", rest)] if rest else []
        is_mfma = op.startswith("v_mfma")
        is_valu = op.startswith("v_") and not is_mfma
        is_vmem = op.startswith(("global_", "buffer_", "flat_"))
        is_ds = op.startswith("ds_")
        is_branch = op.startswith(("s_branch", "s_cbranch", "s_endpgm", "s_barrier", "s_setpc"))
        if is_branch and not op.startswith("s_barrier"):
            self.flush()
        dst, src = set(), set()
        if is_mfma:
            dst = _regs(ops[0]); src = _regs(ops[1]) | _regs(ops[2]); srcc = _regs(ops[3])
        elif is_valu:
            if op.startswith("v_cmp"):
                dst = _regs(ops[0]); src = set().union(*[_regs(o) for o in ops[1:]])
                if op.startswith("v_cmpx"): dst.add("exec")
            elif op.startswith(("v_permlane32_swap", "v_permlane16_swap", "v_swap")):
                dst = _regs(ops[0]) | _regs(ops[1]); src = set(dst)
            elif op.startswith(("v_add_co", "v_sub_co", "v_addc_co", "v_subb_co", "v_div_scale")):
                dst = _regs(ops[0]) | _regs(ops[1]); src = set().union(*[_regs(o) for o in ops[2:]])
            else:
                dst = _regs(ops[0]); src = set().union(*[_regs(o) for o in ops[1:]]) if len(ops) > 1 else set()
                if op.startswith(("v_fmac", "v_dot2c", "v_writelane", "v_pk_fmac")) or "_dpp" in op or "row_" in ln or "quad_perm" in ln:
                    src |= dst
        elif is_vmem:
            st = "store" in op or ("atomic" in op)
            if st or " lds" in ln:
                src = set().union(*[_regs(o) for o in ops])
            else:
                dst = _regs(ops[0]); src = set().union(*[_regs(o) for o in ops[1:]])
        elif is_ds:
            if op.startswith(("ds_read", "ds_bpermute", "ds_permute", "ds_swizzle")) or "_rtn" in op:
                dst = _regs(ops[0]); src = set().union(*[_regs(o) for o in ops[1:]])
            else:
                src = set().union(*[_regs(o) for o in ops])
        else:
            if ops:
                dst = _regs(ops[0]); src = set().union(*[_regs(o) for o in ops[1:]]) if len(ops) > 1 else set()
        is_dpp = is_valu and ("row_" in ln or "quad_perm" in ln or "_dpp" in op)
        is_perml = op.startswith("v_permlane")
        is_rdl = op.startswith(("v_readlane", "v_readfirstlane", "v_writelane"))
        need = 0
        for h in self.hist:
            a = h["age"]
            k = h["kind"]
            if k in ("valu", "trans"):
                vd = {r for r in h["dst"] if r[0] in "va" and r != "vcc"}
                sd = {r for r in h["dst"] if r[0] == "s" or r in ("vcc", "exec")}
                if is_mfma and (vd & (src | srcc)): need = max(need, 2 - a)
                if is_mfma and "exec" in sd: need = max(need, 4 - a)
                if is_dpp and (vd & src): need = max(need, 2 - a)
                if is_dpp and "exec" in sd: need = max(need, 5 - a)
                if is_perml and (vd & src): need = max(need, 2 - a)
                if is_perml and "exec" in sd: need = max(need, 4 - a)
                if is_rdl and (vd & src): need = max(need, 1 - a)
                if is_rdl and (sd & src): need = max(need, 4 - a)
                if is_rdl and "exec" in sd: need = max(need, 4 - a)
                if is_valu and (sd & src): need = max(need, 2 - a)
                if (is_vmem) and (sd & src): need = max(need, 5 - a)
                if k == "trans" and (is_valu or is_mfma) and (vd & src): need = max(need, 1 - a)
                if op.startswith("v_div_fmas") and "vcc" in sd: need = max(need, 4 - a)
                if (not is_valu and not is_mfma and not is_vmem and not is_ds) and (sd & src): need = max(need, 1 - a)
            elif k == "mfma":
                p = h["passes"]
                d = h["dst"]
                if is_mfma:
                    if d & src: need = max(need, p + 4 - a)
                    if d & srcc and not (srcc == d and p >= 4): need = max(need, p + 2 - a)
                    if d & dst and not (srcc == d): need = max(need, p + 4 - a)
                elif (is_valu or is_vmem or is_ds) and (d & (src | dst)): need = max(need, p + 4 - a)
                if is_valu and (h["srcc"] & dst): need = max(need, p - 1 - a)
            elif k == "store":
                if (h["data"] & dst): need = max(need, 2 - a)
            elif k == "salu":
                if "m0" in h["dst"] and (" lds" in ln or "addtid" in op): need = max(need, 1 - a)
        self._nop(max(need, 0))
        self.lines.append("  " + ln)
        self._age(1)
        if is_mfma:
            passes = 8 if "32x32" in op else (2 if "4x4x4" in op else 4)
            if "16x16x4_f32" in op: passes = 8
            self.hist.append(dict(kind="mfma", dst=dst, srcc=srcc, passes=passes, age=0))
        elif is_valu:
            wsg = any(r[0] == "s" or r in ("vcc", "exec") for r in dst)
            self.hist.append(dict(kind="trans" if op.startswith(TRANS) else "valu", dst=dst, wsg=wsg, age=0))
        elif is_vmem and (("x4" in op or "x3" in op) and "store" in op):
            self.hist.append(dict(kind="store", data={r for r in src if r[0] == "v"}, age=0))
        elif not is_vmem and not is_ds:
            self.hist.append(dict(kind="salu", dst=dst, age=0))

    def text(self):
        return "\n".join(self.lines) + "\n"
```

```python
import sys
from asmlib import Asm
NAME = "gated_mix__sliding_block_cached__swiglu_ffn__decode"

WS_EPOCH = 0
WS_QP = 0x1000
WS_GP = 0x40000
WS_UP = 0x60000
WS_ST = 0x80000
WS_OP = 0x100000
WS_YP = 0x200000
WS_STAMP = 0x10000000
L_Q = 0
L_ML = 1024
L_H = 1280
L_O = 2048
LDS_BYTES = 2048 + 8 * 2048
SPIN_MAX = 40000

S_W = 2; S_WAVE = 3
SRD_X, SRD_K, SRD_V, SRD_WQ, SRD_WO, SRD_WG, SRD_WU, SRD_WD, SRD_GW, SRD_OUT, SRD_WS = [4 + 4 * i for i in range(11)]
S_T0 = 48
S_SELLO, S_SELHI = 80, 81
def srd(b): return f"s[{b}:{b+3}]"

def gen(stamps=False, opts=None):
    opts = opts or {}
    a = Asm()
    R = a.raw
    R(f"; @launch grid=(256,1,1) block=(768,1,1) lds={LDS_BYTES}")
    R('.amdgcn_target "amdgcn-amd-amdhsa--gfx950"')
    R(".text")
    R(f".globl {NAME}_kernel")
    R(".p2align 8")
    R(f".type {NAME}_kernel,@function")
    R(f"{NAME}_kernel:")
    def stamp(i):
        if stamps:
            a(f"s_memrealtime s[{86+2*i}:{87+2*i}]")
    def mk_srd(b, p, size):
        a(f"s_mov_b32 s{b}, s{p}")
        a(f"s_and_b32 s{b+1}, s{p+1}, 0xffff")
        a(f"s_mov_b32 s{b+2}, {size}")
        a(f"s_mov_b32 s{b+3}, 0x20000")
    def exec_rows(G):
        lo = (0xFFFF << (16 * G)) & 0xFFFFFFFF if G < 2 else 0
        hi = (0xFFFF << (16 * (G - 2))) & 0xFFFFFFFF if G >= 2 else 0
        a(f"s_mov_b32 exec_lo, {lo:#x}")
        a(f"s_mov_b32 exec_hi, {hi:#x}")
    def exec_all():
        a("s_mov_b64 exec, -1")
    def exec_pat(p):
        a(f"s_mov_b32 exec_lo, {p:#x}")
        a(f"s_mov_b32 exec_hi, {p:#x}")
    def tagcheck(regs, acc, t0, t1):
        first = True
        for q in regs:
            for h in range(2):
                a(f"v_xor_b32 v{t0}, s{S_T0+2*h}, v{q+2*h}")
                a(f"v_xor_b32 v{t1}, s{S_T0+2*h+1}, v{q+2*h+1}")
                if first:
                    a(f"v_or_b32 v{acc}, v{t0}, v{t1}"); first = False
                else:
                    a(f"v_or3_b32 v{acc}, v{acc}, v{t0}, v{t1}")
        a(f"v_and_b32 v{acc}, 0xff, v{acc}")
        a(f"v_cmp_ne_u32 vcc, 0, v{acc}")
    def transpose(Rb, Tb, ne=8):
        for m in range(ne // 2):
            for p in range(4):
                a(f"v_perm_b32 v{Tb+4*(2*p)+m}, v{Rb+4*(2*m+1)+p}, v{Rb+4*(2*m)+p}, s{S_SELLO}")
                a(f"v_perm_b32 v{Tb+4*(2*p+1)+m}, v{Rb+4*(2*m+1)+p}, v{Rb+4*(2*m)+p}, s{S_SELHI}")
    def rowreduce(regs, op, rors=(8, 4, 2, 1)):
        for r in rors:
            for x in regs:
                a(f"{op}_dpp v{x}, v{x}, v{x} row_ror:{r} row_mask:0xf bank_mask:0xf")
    def xrow_reduce(regs, op, tmps):
        for sw in ("v_permlane16_swap_b32", "v_permlane32_swap_b32"):
            for x, t in zip(regs, tmps): a(f"v_mov_b32 v{t}, v{x}")
            for x, t in zip(regs, tmps): a(f"{sw} v{x}, v{t}")
            for x, t in zip(regs, tmps): a(f"{op} v{x}, v{x}, v{t}")

    stamp(0)
    if stamps:
        for i in range(1, 8): a(f"s_mov_b64 s[{86+2*i}:{87+2*i}], 0")
    a("s_cmp_ge_u32 s2, 256")
    a("s_cbranch_scc1 L_end")
    a("""
    s_load_dwordx16 s[52:67], s[0:1], 0
    s_load_dwordx8 s[68:75], s[0:1], 64
    s_load_dwordx2 s[76:77], s[0:1], 96
    v_lshrrev_b32 v1, 6, v0
    v_and_b32 v0, 63, v0
    v_readfirstlane_b32 s3, v1
    v_and_b32 v1, 15, v0
    v_lshrrev_b32 v2, 4, v0
    v_mov_b32 v3, 0xffffff00
    s_mov_b32 s80, 0x05040100
    s_mov_b32 s81, 0x07060302
    s_waitcnt lgkmcnt(0)
    s_load_dword s78, s[76:77], 0
    """)
    mk_srd(SRD_WS, 76, 0x20000000)
    a("s_cmp_ge_u32 s3, 4")
    a("s_cbranch_scc1 L_attn")

    mk_srd(SRD_X, 52, 2048)
    mk_srd(SRD_GW, 70, 1024)
    a(f"""
    v_lshlrev_b32 v4, 4, v0
    buffer_load_dwordx4 v[152:155], v4, {srd(SRD_X)}, 0 offen
    buffer_load_dwordx4 v[156:159], v4, {srd(SRD_X)}, 0 offen offset:1024
    buffer_load_dwordx4 v[160:163], v4, {srd(SRD_GW)}, 0 offen
    """)
    a("""
    v_and_b32 v5, 1, v1
    v_lshlrev_b32 v5, 10, v5
    v_bfe_u32 v6, v1, 1, 1
    v_lshl_add_u32 v5, v6, 6, v5
    v_lshl_add_u32 v5, v2, 4, v5
    v_lshrrev_b32 v6, 3, v1
    v_lshlrev_b32 v6, 2, v6
    v_add_u32 v6, v6, v2
    v_lshlrev_b32 v6, 3, v6
    v_and_b32 v7, 7, v1
    v_lshlrev_b32 v7, 4, v7
    """)
    a("s_cmp_eq_u32 s3, 3")
    a("s_cbranch_scc1 L_h3")
    a("s_cmp_eq_u32 s3, 0")
    a("s_cbranch_scc0 L_h12")

    W0, T0, ACC, XA = 16, 80, 112, 144
    def tile_loads(sr, stride, nblk):
        for t in range(nblk):
            a(f"buffer_load_dwordx4 v[{XA+4*t}:{XA+4*t+3}], v5, {srd(SRD_X)}, s83 offen offset:{128*t}")
        for t in range(nblk):
            for e in range(8):
                r = W0 + 4 * (8 * t + e)
                a(f"buffer_load_dwordx4 v[{r}:{r+3}], v8, {sr}, s82 offen nt")
                if not (t == nblk - 1 and e == 7):
                    a(f"s_add_u32 s82, s82, {stride if e < 7 else 57 * stride}")
    def tile_compute(nblk):
        for t in range(nblk):
            a(f"s_waitcnt vmcnt({8*(nblk-1-t)})")
            transpose(W0 + 32 * t, T0)
            for dd in range(8):
                c = f"v[{ACC+4*dd}:{ACC+4*dd+3}]" if t else "0"
                a(f"v_mfma_f32_16x16x32_bf16 v[{ACC+4*dd}:{ACC+4*dd+3}], v[{XA+4*t}:{XA+4*t+3}], v[{T0+4*dd}:{T0+4*dd+3}], {c}")
        for G in range(4):
            b, half = G >> 1, G & 1
            exec_rows(G)
            for m in range(4):
                d = ACC + 4 * (4 * half + m)
                a(f"v_add_f32_dpp v{8+m}, v{d+2+b}, v{d+b} row_ror:8 row_mask:0xf bank_mask:0xf")
        exec_all()
        tags_ready()
        for m in range(4):
            a(f"v_and_or_b32 v{8+m}, v{8+m}, v3, s{S_T0+m}")
    def tags_ready():
        a("""
        s_waitcnt lgkmcnt(0)
        s_add_u32 s79, s78, 1
        s_mul_i32 s79, s79, 0x9E3779B1
        s_and_b32 s48, s79, 0xff
        s_bfe_u32 s49, s79, 0x80008
        s_bfe_u32 s50, s79, 0x80010
        s_lshr_b32 s51, s79, 24
        """)

    mk_srd(SRD_WQ, 58, 4194304)
    a("""
    v_lshlrev_b32 v8, 13, v6
    v_add_u32 v8, v8, v7
    s_and_b32 s84, s2, 3
    s_lshr_b32 s85, s2, 2
    s_lshl_b32 s82, s84, 20
    s_lshl_b32 s83, s85, 7
    s_add_u32 s82, s82, s83
    s_lshl_b32 s83, s84, 8
    """)
    tile_loads(srd(SRD_WQ), 8192, 2)
    a("s_barrier")
    tile_compute(2)
    a(f"""
    v_lshrrev_b32 v12, 1, v2
    v_lshlrev_b32 v12, 14, v12
    v_and_b32 v13, 1, v2
    v_lshl_add_u32 v12, v13, 4, v12
    v_lshl_add_u32 v12, v7, 1, v12
    s_lshl_b32 s82, s84, 15
    s_lshl_b32 s83, s85, 8
    s_add_u32 s82, s82, s83
    s_add_u32 s82, s82, {WS_QP}
    """)
    exec_pat(0x00FF00FF)
    a(f"buffer_store_dwordx4 v[8:11], v12, {srd(SRD_WS)}, s82 offen sc1")
    exec_all()
    stamp(1)
    a("s_branch L_qgather")

    a.label("L_h12")
    a("s_cmp_ge_u32 s2, 224")
    a("s_cbranch_scc1 L_h12_skip")
    a("""
    s_cmp_eq_u32 s3, 1
    s_cselect_b32 s24, s64, s66
    s_cselect_b32 s25, s65, s67
    s_and_b32 s25, s25, 0xffff
    s_mov_b32 s26, 1835008
    s_mov_b32 s27, 0x20000
    s_movk_i32 s82, 3584
    v_mul_lo_u32 v8, v6, s82
    v_add_u32 v8, v8, v7
    s_and_b32 s84, s2, 7
    s_lshr_b32 s85, s2, 3
    s_mul_i32 s82, s84, 229376
    s_lshl_b32 s83, s85, 7
    s_add_u32 s82, s82, s83
    s_lshl_b32 s83, s84, 7
    """)
    tile_loads(srd(SRD_WG), 3584, 1)
    a("s_barrier")
    tile_compute(1)
    a(f"""
    v_lshrrev_b32 v12, 1, v2
    v_mul_u32_u24 v12, 7168, v12
    v_and_b32 v13, 1, v2
    v_lshl_add_u32 v12, v13, 4, v12
    v_lshl_add_u32 v12, v7, 1, v12
    s_mul_i32 s82, s84, 14336
    s_lshl_b32 s83, s85, 8
    s_add_u32 s82, s82, s83
    s_sub_u32 s83, s3, 1
    s_lshl_b32 s83, s83, 17
    s_add_u32 s82, s82, s83
    s_add_u32 s82, s82, {WS_GP}
    """)
    exec_pat(0x00FF00FF)
    a(f"buffer_store_dwordx4 v[8:11], v12, {srd(SRD_WS)}, s82 offen sc1")
    exec_all()
    stamp(1)
    a("s_branch L_qgather")
    a.label("L_h12_skip")
    a("s_barrier")
    tags_ready()
    a("s_branch L_qgather")

    a.label("L_h3")
    a(f"""
    v_mov_b32 v8, -1
    v_lshlrev_b32 v9, 2, v0
    ds_write_b32 v9, v8 offset:{L_ML}
    s_waitcnt lgkmcnt(0)
    s_barrier
    """)
    tags_ready()

    a.label("L_qgather")
    a("s_cmp_ge_u32 s3, 2")
    a("s_cbranch_scc1 L_qdone")
    a(f"""
    s_lshr_b32 s82, s2, 7
    s_lshl_b32 s82, s82, 14
    s_bfe_u32 s83, s2, 0x30004
    s_lshl_b32 s83, s83, 11
    s_add_u32 s82, s82, s83
    s_lshl_b32 s83, s3, 10
    s_add_u32 s82, s82, s83
    s_add_u32 s82, s82, {WS_QP}
    s_add_u32 s83, s82, 32768
    s_add_u32 s84, s82, 65536
    s_add_u32 s85, s82, 98304
    s_mov_b32 s79, 0
    """)
    NATT = opts.get("natt", 3)
    def q_issue(bi):
        for ks in range(4):
            r = 16 + 16 * bi + 4 * ks
            a(f"buffer_load_dwordx4 v[{r}:{r+3}], v4, {srd(SRD_WS)}, s{82+ks} offen sc1")
    for bi in range(NATT):
        q_issue(bi)
        if bi < NATT - 1: a(f"s_sleep {opts.get('qsleep', 12)}")
    a.label("L_qloop")
    for bi in range(NATT):
        a(f"s_waitcnt vmcnt({4*(NATT-1)})")
        tagcheck([16 + 16 * bi + 4 * ks for ks in range(4)], 8, 9, 10)
        a(f"s_cbranch_vccz L_qok{bi}")
        q_issue(bi)
    a(f"""
    s_add_u32 s79, s79, 1
    s_cmp_lt_u32 s79, {SPIN_MAX}
    s_cbranch_scc1 L_qloop
    """)
    for bi in range(NATT):
        a.label(f"L_qok{bi}")
        r = 16 + 16 * bi
        for m in range(4):
            a(f"v_add_f32 v{8+m}, v{r+m}, v{r+4+m}")
            a(f"v_add_f32 v{12+m}, v{r+8+m}, v{r+12+m}")
        if bi < NATT - 1: a("s_branch L_qsum")
    a.label("L_qsum")
    for m in range(4):
        a(f"v_add_f32 v{8+m}, v{8+m}, v{12+m}")
    a(f"""
    v_cvt_pk_bf16_f32 v8, v8, v9
    v_cvt_pk_bf16_f32 v9, v10, v11
    v_lshlrev_b32 v10, 3, v0
    s_lshl_b32 s82, s3, 9
    v_add_u32 v10, s82, v10
    ds_write_b64 v10, v[8:9] offset:{L_Q}
    s_waitcnt lgkmcnt(0)
    """)
    a.label("L_qdone")
    stamp(2)
    a("s_barrier")

    a("s_waitcnt vmcnt(0)")
    a("v_mov_b32 v8, 0")
    a("v_mov_b32 v9, 0")
    for m in range(4):
        a(f"v_dot2_f32_bf16 v8, v{152+m}, v{160+m}, v8")
        a(f"v_dot2_f32_bf16 v9, v{156+m}, v{160+m}, v9")
    a("s_nop 3")
    rowreduce([8, 9], "v_add_f32")
    xrow_reduce([8, 9], "v_add_f32", [10, 11])
    a("""
    v_mul_f32 v8, 0xbfb8aa3b, v8
    v_mul_f32 v9, 0xbfb8aa3b, v9
    v_exp_f32 v8, v8
    v_exp_f32 v9, v9
    v_add_f32 v8, 1.0, v8
    v_add_f32 v9, 1.0, v9
    v_rcp_f32 v150, v8
    v_rcp_f32 v151, v9
    """)
    a("v_mov_b32 v149, 0")
    a("s_cmp_lt_u32 s2, 32")
    a("s_cbranch_scc1 L_ffn_done")
    a(f"""
    v_and_b32 v8, 7, v0
    v_mul_u32_u24 v8, 14336, v8
    v_bfe_u32 v9, v0, 3, 1
    v_lshl_add_u32 v8, v9, 4, v8
    v_bfe_u32 v9, v0, 4, 1
    v_mul_u32_u24 v9, 7168, v9
    v_add_u32 v8, v8, v9
    v_lshrrev_b32 v9, 5, v0
    v_lshlrev_b32 v9, 17, v9
    v_add_u32 v8, v8, v9
    s_sub_u32 s82, s2, 32
    s_lshl_b32 s82, s82, 5
    s_add_u32 s82, s82, {WS_GP}
    s_mov_b32 s79, 0
    """)
    assert WS_UP - WS_GP == 1 << 17
    a.label("L_ffn_loop")
    a(f"buffer_load_dwordx4 v[16:19], v8, {srd(SRD_WS)}, s82 offen sc1")
    a("s_waitcnt vmcnt(0)")
    tagcheck([16], 9, 10, 11)
    a("s_cbranch_vccz L_ffn_ok")
    a(f"""
    s_add_u32 s79, s79, 1
    s_cmp_lt_u32 s79, {SPIN_MAX}
    s_cbranch_scc1 L_ffn_loop
    """)
    a.label("L_ffn_ok")
    for ctl in ("quad_perm:[1,0,3,2]", "quad_perm:[2,3,0,1]", "row_half_mirror"):
        for m in range(4):
            a(f"v_add_f32_dpp v{16+m}, v{16+m}, v{16+m} {ctl} row_mask:0xf bank_mask:0xf")
    for m in range(4): a(f"v_mov_b32 v{20+m}, v{16+m}")
    for m in range(4): a(f"v_permlane32_swap_b32 v{16+m}, v{20+m}")
    for m in range(4): a(f"v_mul_f32 v{24+m}, 0xbfb8aa3b, v{16+m}")
    for m in range(4): a(f"v_exp_f32 v{24+m}, v{24+m}")
    for m in range(4): a(f"v_add_f32 v{24+m}, 1.0, v{24+m}")
    for m in range(4): a(f"v_rcp_f32 v{24+m}, v{24+m}")
    for m in range(4): a(f"v_mul_f32 v{16+m}, v{16+m}, v{20+m}")
    for m in range(4): a(f"v_mul_f32 v{16+m}, v{16+m}, v{24+m}")
    a(f"""
    v_and_b32 v9, 16, v0
    v_cmp_ne_u32 vcc, 0, v9
    v_cndmask_b32 v9, v150, v151, vcc
    v_sub_f32 v9, 1.0, v9
    """)
    for m in range(4): a(f"v_mul_f32 v{16+m}, v{16+m}, v9")
    a(f"""
    v_lshrrev_b32 v9, 3, v0
    v_lshlrev_b32 v9, 4, v9
    s_lshl_b32 s82, s3, 6
    v_add_u32 v9, s82, v9
    s_mov_b32 exec_lo, 0x01010101
    s_mov_b32 exec_hi, 0
    ds_write_b128 v9, v[16:19] offset:{L_H}
    s_mov_b64 exec, -1
    v_and_b32 v9, 1, v1
    v_lshlrev_b32 v9, 5, v9
    v_lshl_add_u32 v9, v2, 2, v9
    v_add_u32 v9, s82, v9
    s_waitcnt lgkmcnt(0)
    ds_read_b32 v10, v9 offset:{L_H}
    ds_read_b32 v11, v9 offset:{L_H+16}
    s_waitcnt lgkmcnt(0)
    v_cvt_pk_bf16_f32 v149, v10, v11
    """)
    a.label("L_ffn_done")
    stamp(3)

    WC, TC = 80, 112
    mk_srd(SRD_WO, 60, 4194304)
    mk_srd(SRD_WD, 68, 1835008)
    a(f"""
    v_lshlrev_b32 v8, 15, v2
    v_lshl_add_u32 v8, v1, 4, v8
    v_lshlrev_b32 v9, 10, v2
    v_lshl_add_u32 v9, v1, 4, v9
    s_lshr_b32 s82, s2, 3
    s_lshl_b32 s82, s82, 17
    s_and_b32 s83, s2, 7
    s_lshl_b32 s83, s83, 10
    s_add_u32 s82, s82, s83
    s_lshl_b32 s83, s3, 8
    s_add_u32 s82, s82, s83
    s_max_u32 s84, s2, 32
    s_sub_u32 s84, s84, 32
    s_lshl_b32 s84, s84, 13
    s_add_u32 s84, s84, s83
    s_add_u32 s85, s84, 4096
    """)
    for e in range(4):
        a(f"buffer_load_dwordx4 v[{WC+4*e}:{WC+4*e+3}], v8, {srd(SRD_WO)}, s82 offen nt")
        if e < 3: a("s_add_u32 s82, s82, 8192")
    a(f"buffer_load_dwordx4 v[{WC+16}:{WC+19}], v9, {srd(SRD_WD)}, s84 offen nt")
    a(f"buffer_load_dwordx4 v[{WC+20}:{WC+23}], v9, {srd(SRD_WD)}, s85 offen nt")

    a(f"""
    v_bfe_u32 v8, v0, 2, 2
    v_lshlrev_b32 v8, 3, v8
    s_mov_b32 s79, 0
    """)
    a.label("L_ml_loop")
    for x in range(8):
        a(f"ds_read_b64 v[{16+2*x}:{17+2*x}], v8 offset:{L_ML+32*x}")
    a("s_waitcnt lgkmcnt(0)")
    a("v_max_u32 v9, v16, v17")
    for x in range(1, 8):
        a(f"v_max3_u32 v9, v9, v{16+2*x}, v{17+2*x}")
    a("v_cmp_eq_u32 vcc, -1, v9")
    a("s_cbranch_vccz L_ml_ok")
    a(f"""
    s_sleep 1
    s_add_u32 s79, s79, 1
    s_cmp_lt_u32 s79, {SPIN_MAX*8}
    s_cbranch_scc1 L_ml_loop
    """)
    a.label("L_ml_ok")
    a("v_max3_f32 v9, v16, v18, v20")
    a("v_max3_f32 v9, v9, v22, v24")
    a("v_max3_f32 v9, v9, v26, v28")
    a("v_max_f32 v9, v9, v30")
    FAC = 40
    for x in range(8): a(f"v_sub_f32 v{FAC+x}, v{16+2*x}, v9")
    for x in range(8): a(f"v_exp_f32 v{FAC+x}, v{FAC+x}")
    a(f"v_mul_f32 v10, v{FAC}, v17")
    for x in range(1, 8): a(f"v_fmac_f32 v10, v{FAC+x}, v{17+2*x}")
    a("s_cmp_lg_u32 s3, 0")
    a("s_cbranch_scc1 L_st_skip")
    a(f"""
    v_and_or_b32 v12, v9, v3, s48
    v_and_or_b32 v13, v10, v3, s49
    v_mov_b32 v14, s50
    v_mov_b32 v15, s51
    v_lshlrev_b32 v11, 2, v0
    s_lshl_b32 s82, s2, 6
    s_add_u32 s82, s82, {WS_ST}
    s_mov_b32 exec_lo, 0x1111
    s_mov_b32 exec_hi, 0
    buffer_store_dwordx4 v[12:15], v11, {srd(SRD_WS)}, s82 offen sc1
    s_mov_b64 exec, -1
    """)
    a.label("L_st_skip")
    stamp(4)
    a(f"""
    v_and_b32 v8, 1, v1
    v_lshlrev_b32 v8, 13, v8
    v_lshrrev_b32 v9, 1, v1
    v_lshl_add_u32 v8, v9, 6, v8
    s_lshr_b32 s82, s2, 5
    s_lshl_b32 s82, s82, 10
    s_bfe_u32 s83, s2, 0x20003
    s_lshl_b32 s83, s83, 4
    s_add_u32 s82, s82, s83
    s_add_u32 s82, s82, {WS_ST}
    s_mov_b32 s79, 0
    """)
    a.label("L_st_loop")
    a(f"buffer_load_dwordx4 v[16:19], v8, {srd(SRD_WS)}, s82 offen sc1")
    a(f"buffer_load_dwordx4 v[20:23], v8, {srd(SRD_WS)}, s82 offen offset:512 sc1")
    a("s_waitcnt vmcnt(0)")
    tagcheck([16, 20], 9, 10, 11)
    a("s_cbranch_vccz L_st_ok")
    a(f"""
    s_add_u32 s79, s79, 1
    s_cmp_lt_u32 s79, {SPIN_MAX}
    s_cbranch_scc1 L_st_loop
    """)
    a.label("L_st_ok")
    a("""
    v_and_b32 v16, v3, v16
    v_and_b32 v20, v3, v20
    v_max_f32 v9, v16, v20
    """)
    rowreduce([9], "v_max_f32", (8, 4, 2))
    a("""
    v_sub_f32 v16, v16, v9
    v_sub_f32 v20, v20, v9
    v_exp_f32 v16, v16
    v_exp_f32 v20, v20
    v_mul_f32 v10, v16, v17
    v_fmac_f32 v10, v20, v21
    """)
    rowreduce([10], "v_add_f32", (8, 4, 2))
    a("""
    v_rcp_f32 v10, v10
    v_and_b32 v11, 1, v1
    v_cmp_ne_u32 vcc, 0, v11
    v_cndmask_b32 v11, v150, v151, vcc
    v_mul_f32 v10, v10, v11
    v_mul_f32 v147, v16, v10
    v_mul_f32 v148, v20, v10
    """)
    transpose(WC, TC, 6)
    for dd in range(8): a(f"v_mov_b32 v{TC+4*dd+3}, 0")
    a(f"""
    v_and_b32 v8, 1, v1
    v_lshlrev_b32 v8, 18, v8
    v_lshrrev_b32 v9, 1, v1
    v_lshl_add_u32 v8, v9, 11, v8
    v_lshl_add_u32 v8, v2, 4, v8
    s_lshr_b32 s82, s2, 5
    s_lshl_b32 s82, s82, 15
    s_and_b32 s83, s2, 7
    s_lshl_b32 s83, s83, 8
    s_add_u32 s82, s82, s83
    s_bfe_u32 s83, s2, 0x20003
    s_lshl_b32 s83, s83, 6
    s_add_u32 s82, s82, s83
    s_add_u32 s82, s82, {WS_OP}
    s_add_u32 s83, s82, 16384
    s_lshl_b32 s84, s3, 10
    v_add_u32 v9, s84, v4
    s_lshl_b32 s84, s2, 11
    s_add_u32 s84, s84, {WS_OP}
    v_mov_b32 v146, 0
    """)
    stamp(5)
    a("s_barrier")
    a("s_cmp_ge_u32 s3, 2")
    a("s_cbranch_scc1 L_ored_done")
    for x in range(8):
        a(f"ds_read_b128 v[{48+4*x}:{51+4*x}], v9 offset:{L_O+2048*x}")
    for x in range(8):
        a(f"s_waitcnt lgkmcnt({7-x})")
        for m in range(4):
            if x == 0: a(f"v_mul_f32 v{12+m}, v{FAC}, v{48+m}")
            else: a(f"v_fmac_f32 v{12+m}, v{FAC+x}, v{48+4*x+m}")
    for m in range(4): a(f"v_and_or_b32 v{12+m}, v{12+m}, v3, s{S_T0+m}")
    a(f"buffer_store_dwordx4 v[12:15], v9, {srd(SRD_WS)}, s84 offen sc1")
    a.label("L_ored_done")
    a("s_mov_b32 s79, 0")
    a.label("L_o_loop")
    a(f"buffer_load_dwordx4 v[16:19], v8, {srd(SRD_WS)}, s82 offen sc1")
    a(f"buffer_load_dwordx4 v[20:23], v8, {srd(SRD_WS)}, s83 offen sc1")
    a("s_waitcnt vmcnt(0)")
    tagcheck([16, 20], 24, 25, 26)
    a("s_cbranch_vccz L_o_ok")
    a(f"""
    s_add_u32 s79, s79, 1
    s_cmp_lt_u32 s79, {SPIN_MAX}
    s_cbranch_scc1 L_o_loop
    """)
    a.label("L_o_ok")
    stamp(6)
    for m in range(4): a(f"v_mul_f32 v{16+m}, v147, v{16+m}")
    for m in range(4): a(f"v_fmac_f32 v{16+m}, v148, v{20+m}")
    rowreduce([16, 17, 18, 19], "v_add_f32", (8, 4, 2))
    a("v_cvt_pk_bf16_f32 v144, v16, v17")
    a("v_cvt_pk_bf16_f32 v145, v18, v19")
    a("v_mov_b32 v146, v149")
    a("v_mov_b32 v147, 0")
    D = 48
    for dd in range(8):
        a(f"v_mfma_f32_16x16x32_bf16 v[{D+4*dd}:{D+4*dd+3}], v[144:147], v[{TC+4*dd}:{TC+4*dd+3}], 0")
    a(f"""
    v_lshrrev_b32 v12, 1, v2
    v_lshlrev_b32 v12, 11, v12
    v_and_b32 v13, 1, v2
    v_lshl_add_u32 v12, v13, 4, v12
    v_lshl_add_u32 v12, v1, 5, v12
    s_lshl_b32 s82, s2, 12
    s_lshl_b32 s83, s3, 9
    s_add_u32 s82, s82, s83
    s_add_u32 s82, s82, {WS_YP}
    """)
    for G in range(4):
        b, half = G >> 1, G & 1
        exec_rows(G)
        for m in range(4):
            a(f"v_and_or_b32 v{8+m}, v{D+4*(4*half+m)+b}, v3, s{S_T0+m}")
    exec_all()
    a(f"buffer_store_dwordx4 v[8:11], v12, {srd(SRD_WS)}, s82 offen sc1")
    stamp(7)
    a("s_branch L_fin")

    a.label("L_attn")
    KR, VR, QB, SR, PR = 16, 48, 80, 96, 104
    mk_srd(SRD_K, 54, 134217728)
    mk_srd(SRD_V, 56, 134217728)
    a("""
    s_sub_u32 s3, s3, 4
    s_lshr_b32 s82, s2, 4
    s_lshl_b32 s82, s82, 23
    s_add_u32 s82, s82, 0x700000
    s_and_b32 s83, s2, 15
    s_lshl_b32 s83, s83, 16
    s_add_u32 s82, s82, s83
    s_lshl_b32 s83, s3, 13
    s_add_u32 s82, s82, s83
    s_add_u32 s83, s82, 4096
    v_lshlrev_b32 v4, 8, v1
    v_lshl_add_u32 v4, v2, 4, v4
    v_lshlrev_b32 v5, 10, v2
    v_lshl_add_u32 v5, v1, 4, v5
    """)
    tags_ready()
    a("s_barrier")
    for T in range(2):
        for jj in range(4):
            r = KR + 4 * (4 * T + jj)
            a(f"buffer_load_dwordx4 v[{r}:{r+3}], v4, {srd(SRD_K)}, s{82+T} offen offset:{64*jj} nt")
    for e in range(8):
        r = VR + 4 * e
        a(f"buffer_load_dwordx4 v[{r}:{r+3}], v5, {srd(SRD_V)}, s{82+(e>>2)} offen offset:{256*(e&3)} nt")
    stamp(1)
    a(f"""
    v_and_b32 v6, 3, v1
    v_lshlrev_b32 v6, 8, v6
    v_lshl_add_u32 v6, v2, 4, v6
    """)
    a("s_barrier")
    stamp(2)
    for jj in range(4):
        a(f"ds_read_b128 v[{QB+4*jj}:{QB+4*jj+3}], v6 offset:{L_Q+64*jj}")
    a("s_waitcnt vmcnt(8) lgkmcnt(0)")
    stamp(3)
    for jj in range(4):
        for T in range(2):
            c = f"v[{SR+4*T}:{SR+4*T+3}]" if jj else "0"
            r = KR + 4 * (4 * T + jj)
            a(f"v_mfma_f32_16x16x32_bf16 v[{SR+4*T}:{SR+4*T+3}], v[{r}:{r+3}], v[{QB+4*jj}:{QB+4*jj+3}], {c}")
    a("s_mov_b32 s84, 0x3e0293ee")
    for x in range(8): a(f"v_mul_f32 v{SR+x}, s84, v{SR+x}")
    a(f"v_max3_f32 v8, v{SR}, v{SR+1}, v{SR+2}")
    a(f"v_max3_f32 v8, v8, v{SR+3}, v{SR+4}")
    a(f"v_max3_f32 v8, v8, v{SR+5}, v{SR+6}")
    a(f"v_max_f32 v8, v8, v{SR+7}")
    xrow_reduce([8], "v_max_f32", [10])
    a("v_and_b32 v8, v3, v8")
    for x in range(8): a(f"v_sub_f32 v{SR+x}, v{SR+x}, v8")
    for x in range(8): a(f"v_exp_f32 v{SR+x}, v{SR+x}")
    a(f"v_add_f32 v9, v{SR}, v{SR+1}")
    for x in range(2, 8): a(f"v_add_f32 v9, v9, v{SR+x}")
    for x in range(4): a(f"v_cvt_pk_bf16_f32 v{PR+x}, v{SR+2*x}, v{SR+2*x+1}")
    xrow_reduce([9], "v_add_f32", [10])
    a(f"""
    v_lshlrev_b32 v10, 3, v0
    s_lshl_b32 s84, s3, 5
    v_add_u32 v10, s84, v10
    s_mov_b32 exec_lo, 0xf
    s_mov_b32 exec_hi, 0
    ds_write_b64 v10, v[8:9] offset:{L_ML}
    s_mov_b64 exec, -1
    v_lshlrev_b32 v10, 6, v1
    v_lshl_add_u32 v10, v2, 4, v10
    s_lshl_b32 s84, s3, 11
    v_add_u32 v10, s84, v10
    """)
    stamp(4)
    a("s_waitcnt vmcnt(0)")
    stamp(5)
    transpose(VR, KR)
    for dd in range(8):
        a(f"v_mfma_f32_16x16x32_bf16 v[{VR+4*dd}:{VR+4*dd+3}], v[{KR+4*dd}:{KR+4*dd+3}], v[{PR}:{PR+3}], 0")
    exec_pat(0x000F000F)
    for dd in range(8):
        a(f"ds_write_b128 v10, v[{VR+4*dd}:{VR+4*dd+3}] offset:{L_O+256*dd}")
    exec_all()
    a("s_waitcnt lgkmcnt(0)")
    a("s_barrier")
    stamp(6)
    a("s_add_u32 s3, s3, 4")
    a("s_cmp_lg_u32 s3, 4")
    a("s_cbranch_scc1 L_fin")
    mk_srd(SRD_OUT, 72, 2048)
    a(f"""
    v_lshlrev_b32 v4, 12, v0
    s_lshl_b32 s82, s2, 4
    s_add_u32 s82, s82, {WS_YP}
    s_add_u32 s83, s82, 0x40000
    s_add_u32 s84, s82, 0x80000
    s_add_u32 s85, s82, 0xc0000
    s_mov_b32 s79, 0
    """)
    a.label("L_y_loop")
    for i in range(4):
        a(f"buffer_load_dwordx4 v[{16+4*i}:{19+4*i}], v4, {srd(SRD_WS)}, s{82+i} offen sc1")
    a("s_waitcnt vmcnt(0)")
    tagcheck([16, 20, 24, 28], 8, 9, 10)
    a("s_cbranch_vccz L_y_ok")
    a(f"""
    s_add_u32 s79, s79, 1
    s_cmp_lt_u32 s79, {SPIN_MAX}
    s_cbranch_scc1 L_y_loop
    """)
    a.label("L_y_ok")
    for m in range(4):
        a(f"v_add_f32 v{16+m}, v{16+m}, v{20+m}")
        a(f"v_add_f32 v{24+m}, v{24+m}, v{28+m}")
    for m in range(4): a(f"v_add_f32 v{16+m}, v{16+m}, v{24+m}")
    rowreduce([16, 17, 18, 19], "v_add_f32")
    xrow_reduce([16, 17, 18, 19], "v_add_f32", [20, 21, 22, 23])
    a(f"""
    v_cvt_pk_bf16_f32 v16, v16, v17
    v_cvt_pk_bf16_f32 v17, v18, v19
    v_mov_b32 v4, 0
    s_lshl_b32 s82, s2, 3
    s_mov_b32 exec_lo, 1
    s_mov_b32 exec_hi, 0
    buffer_store_dwordx2 v[16:17], v4, {srd(SRD_OUT)}, s82 offen
    s_cmp_lg_u32 s2, 0
    s_cbranch_scc1 L_noepoch
    s_add_u32 s82, s78, 1
    v_mov_b32 v5, s82
    buffer_store_dword v5, v4, {srd(SRD_WS)}, 0 offen sc1
    """)
    a.label("L_noepoch")
    exec_all()
    stamp(7)
    a.label("L_fin")
    if stamps:
        a(f"""
        s_waitcnt lgkmcnt(0)
        s_mul_i32 s82, s2, 12
        s_add_u32 s82, s82, s3
        s_lshl_b32 s82, s82, 6
        s_add_u32 s82, s82, {WS_STAMP}
        v_mov_b32 v4, 0
        """)
        for i in range(16): a(f"v_mov_b32 v{16+i}, s{86+i}")
        a("s_mov_b32 exec_lo, 1")
        a("s_mov_b32 exec_hi, 0")
        for i in range(4):
            a(f"buffer_store_dwordx4 v[{16+4*i}:{19+4*i}], v4, {srd(SRD_WS)}, s82 offen offset:{16*i}")
    a.label("L_end")
    a("s_endpgm")
    R('.section .rodata,"a"')
    R(".p2align 6")
    R(f".amdhsa_kernel {NAME}_kernel")
    R("  .amdhsa_next_free_vgpr 168")
    R("  .amdhsa_next_free_sgpr 102")
    R("  .amdhsa_accum_offset 168")
    R("  .amdhsa_group_segment_fixed_size 0")
    R("  .amdhsa_kernarg_size 104")
    R("  .amdhsa_user_sgpr_count 2")
    R("  .amdhsa_user_sgpr_kernarg_segment_ptr 1")
    R("  .amdhsa_system_sgpr_workgroup_id_x 1")
    R(".end_amdhsa_kernel")
    return a.text()

if __name__ == "__main__":
    open("v1.s", "w").write(gen(False))
    open("v1s.s", "w").write(gen(True))
```

```python
import sys
from asmlib import Asm
NAME = "gated_mix__sliding_block_cached__swiglu_ffn__decode"

WS_EPOCH = 0
WS_QP = 0x1000
WS_GP = 0x40000
WS_UP = 0x60000
WS_ST = 0x80000
WS_OP = 0x100000
WS_YP = 0x200000
WS_STAMP = 0x10000000
L_Q = 0
L_ML = 1024
L_H = 1280
L_O = 2048
LDS_BYTES = 2048 + 8 * 2048
SPIN_MAX = 40000

S_W = 2; S_WAVE = 3
SRD_X, SRD_K, SRD_V, SRD_WQ, SRD_WO, SRD_WG, SRD_WU, SRD_WD, SRD_GW, SRD_OUT, SRD_WS = [4 + 4 * i for i in range(11)]
S_T0 = 48
S_SELLO, S_SELHI = 80, 81
def srd(b): return f"s[{b}:{b+3}]"

def gen(stamps=False, opts=None):
    opts = opts or {}
    a = Asm()
    R = a.raw
    R(f"; @launch grid=(256,1,1) block=(768,1,1) lds={LDS_BYTES}")
    R('.amdgcn_target "amdgcn-amd-amdhsa--gfx950"')
    R(".text")
    R(f".globl {NAME}_kernel")
    R(".p2align 8")
    R(f".type {NAME}_kernel,@function")
    R(f"{NAME}_kernel:")
    def stamp(i):
        if stamps:
            a(f"s_memrealtime s[{86+2*i}:{87+2*i}]")
    def mk_srd(b, p, size):
        a(f"s_mov_b32 s{b}, s{p}")
        a(f"s_and_b32 s{b+1}, s{p+1}, 0xffff")
        a(f"s_mov_b32 s{b+2}, {size}")
        a(f"s_mov_b32 s{b+3}, 0x20000")
    def exec_rows(G):
        lo = (0xFFFF << (16 * G)) & 0xFFFFFFFF if G < 2 else 0
        hi = (0xFFFF << (16 * (G - 2))) & 0xFFFFFFFF if G >= 2 else 0
        a(f"s_mov_b32 exec_lo, {lo:#x}")
        a(f"s_mov_b32 exec_hi, {hi:#x}")
    def exec_all():
        a("s_mov_b64 exec, -1")
    def exec_pat(p):
        a(f"s_mov_b32 exec_lo, {p:#x}")
        a(f"s_mov_b32 exec_hi, {p:#x}")
    def tagcheck(regs, acc, t0, t1):
        first = True
        for q in regs:
            for h in range(2):
                a(f"v_xor_b32 v{t0}, s{S_T0+2*h}, v{q+2*h}")
                a(f"v_xor_b32 v{t1}, s{S_T0+2*h+1}, v{q+2*h+1}")
                if first:
                    a(f"v_or_b32 v{acc}, v{t0}, v{t1}"); first = False
                else:
                    a(f"v_or3_b32 v{acc}, v{acc}, v{t0}, v{t1}")
        a(f"v_and_b32 v{acc}, 0xff, v{acc}")
        a(f"v_cmp_ne_u32 vcc, 0, v{acc}")
    def transpose(Rb, Tb, ne=8):
        for m in range(ne // 2):
            for p in range(4):
                a(f"v_perm_b32 v{Tb+4*(2*p)+m}, v{Rb+4*(2*m+1)+p}, v{Rb+4*(2*m)+p}, s{S_SELLO}")
                a(f"v_perm_b32 v{Tb+4*(2*p+1)+m}, v{Rb+4*(2*m+1)+p}, v{Rb+4*(2*m)+p}, s{S_SELHI}")
    def rowreduce(regs, op, rors=(8, 4, 2, 1)):
        for r in rors:
            for x in regs:
                a(f"{op}_dpp v{x}, v{x}, v{x} row_ror:{r} row_mask:0xf bank_mask:0xf")
    def xrow_reduce(regs, op, tmps):
        for sw in ("v_permlane16_swap_b32", "v_permlane32_swap_b32"):
            for x, t in zip(regs, tmps): a(f"v_mov_b32 v{t}, v{x}")
            for x, t in zip(regs, tmps): a(f"{sw} v{x}, v{t}")
            for x, t in zip(regs, tmps): a(f"{op} v{x}, v{x}, v{t}")

    stamp(0)
    if stamps:
        for i in range(1, 8): a(f"s_mov_b64 s[{86+2*i}:{87+2*i}], 0")
    a("s_cmp_ge_u32 s2, 256")
    a("s_cbranch_scc1 L_end")
    a("""
    s_load_dwordx16 s[52:67], s[0:1], 0
    s_load_dwordx8 s[68:75], s[0:1], 64
    s_load_dwordx2 s[76:77], s[0:1], 96
    v_lshrrev_b32 v1, 6, v0
    v_and_b32 v0, 63, v0
    v_readfirstlane_b32 s3, v1
    v_and_b32 v1, 15, v0
    v_lshrrev_b32 v2, 4, v0
    v_mov_b32 v3, 0xffffff00
    s_mov_b32 s80, 0x05040100
    s_mov_b32 s81, 0x07060302
    s_waitcnt lgkmcnt(0)
    s_load_dword s78, s[76:77], 0
    """)
    mk_srd(SRD_WS, 76, 0x20000000)
    a("s_cmp_ge_u32 s3, 4")
    a("s_cbranch_scc1 L_attn")

    mk_srd(SRD_X, 52, 2048)
    mk_srd(SRD_GW, 70, 1024)
    a(f"""
    v_lshlrev_b32 v4, 4, v0
    buffer_load_dwordx4 v[152:155], v4, {srd(SRD_X)}, 0 offen
    buffer_load_dwordx4 v[156:159], v4, {srd(SRD_X)}, 0 offen offset:1024
    buffer_load_dwordx4 v[160:163], v4, {srd(SRD_GW)}, 0 offen
    """)
    a("""
    v_and_b32 v5, 1, v1
    v_lshlrev_b32 v5, 10, v5
    v_bfe_u32 v6, v1, 1, 1
    v_lshl_add_u32 v5, v6, 6, v5
    v_lshl_add_u32 v5, v2, 4, v5
    v_lshrrev_b32 v6, 3, v1
    v_lshlrev_b32 v6, 2, v6
    v_add_u32 v6, v6, v2
    v_lshlrev_b32 v6, 3, v6
    v_and_b32 v7, 7, v1
    v_lshlrev_b32 v7, 4, v7
    """)
    a("s_cmp_eq_u32 s3, 3")
    a("s_cbranch_scc1 L_h3")
    a("s_cmp_eq_u32 s3, 0")
    a("s_cbranch_scc0 L_h12")

    W0, T0, ACC, XA = 16, 80, 112, 144
    def tile_loads(sr, stride, nblk):
        for t in range(nblk):
            a(f"buffer_load_dwordx4 v[{XA+4*t}:{XA+4*t+3}], v5, {srd(SRD_X)}, s83 offen offset:{128*t}")
        for t in range(nblk):
            for e in range(8):
                r = W0 + 4 * (8 * t + e)
                a(f"buffer_load_dwordx4 v[{r}:{r+3}], v8, {sr}, s82 offen nt")
                if not (t == nblk - 1 and e == 7):
                    a(f"s_add_u32 s82, s82, {stride if e < 7 else 57 * stride}")
    def tile_compute(nblk):
        for t in range(nblk):
            a(f"s_waitcnt vmcnt({8*(nblk-1-t)})")
            transpose(W0 + 32 * t, T0)
            for dd in range(8):
                c = f"v[{ACC+4*dd}:{ACC+4*dd+3}]" if t else "0"
                a(f"v_mfma_f32_16x16x32_bf16 v[{ACC+4*dd}:{ACC+4*dd+3}], v[{XA+4*t}:{XA+4*t+3}], v[{T0+4*dd}:{T0+4*dd+3}], {c}")
        for G in range(4):
            b, half = G >> 1, G & 1
            exec_rows(G)
            for m in range(4):
                d = ACC + 4 * (4 * half + m)
                a(f"v_add_f32_dpp v{8+m}, v{d+2+b}, v{d+b} row_ror:8 row_mask:0xf bank_mask:0xf")
        exec_all()
        tags_ready()
        for m in range(4):
            a(f"v_and_or_b32 v{8+m}, v{8+m}, v3, s{S_T0+m}")
    def tags_ready():
        a("""
        s_waitcnt lgkmcnt(0)
        s_add_u32 s79, s78, 1
        s_mul_i32 s79, s79, 0x9E3779B1
        s_and_b32 s48, s79, 0xff
        s_bfe_u32 s49, s79, 0x80008
        s_bfe_u32 s50, s79, 0x80010
        s_lshr_b32 s51, s79, 24
        """)

    mk_srd(SRD_WQ, 58, 4194304)
    a("""
    v_lshlrev_b32 v8, 13, v6
    v_add_u32 v8, v8, v7
    s_and_b32 s84, s2, 3
    s_lshr_b32 s85, s2, 2
    s_lshl_b32 s82, s84, 20
    s_lshl_b32 s83, s85, 7
    s_add_u32 s82, s82, s83
    s_lshl_b32 s83, s84, 8
    """)
    tile_loads(srd(SRD_WQ), 8192, 2)
    a("s_barrier")
    tile_compute(2)
    a(f"""
    v_lshrrev_b32 v12, 1, v2
    v_lshlrev_b32 v12, 14, v12
    v_and_b32 v13, 1, v2
    v_lshl_add_u32 v12, v13, 4, v12
    v_lshl_add_u32 v12, v7, 1, v12
    s_lshl_b32 s82, s84, 15
    s_lshl_b32 s83, s85, 8
    s_add_u32 s82, s82, s83
    s_add_u32 s82, s82, {WS_QP}
    """)
    exec_pat(0x00FF00FF)
    a(f"buffer_store_dwordx4 v[8:11], v12, {srd(SRD_WS)}, s82 offen sc1")
    exec_all()
    stamp(1)
    a("s_branch L_qgather")

    a.label("L_h12")
    a("s_cmp_ge_u32 s2, 224")
    a("s_cbranch_scc1 L_h12_skip")
    a("""
    s_cmp_eq_u32 s3, 1
    s_cselect_b32 s24, s64, s66
    s_cselect_b32 s25, s65, s67
    s_and_b32 s25, s25, 0xffff
    s_mov_b32 s26, 1835008
    s_mov_b32 s27, 0x20000
    s_movk_i32 s82, 3584
    v_mul_lo_u32 v8, v6, s82
    v_add_u32 v8, v8, v7
    s_and_b32 s84, s2, 7
    s_lshr_b32 s85, s2, 3
    s_mul_i32 s82, s84, 229376
    s_lshl_b32 s83, s85, 7
    s_add_u32 s82, s82, s83
    s_lshl_b32 s83, s84, 7
    """)
    tile_loads(srd(SRD_WG), 3584, 1)
    a("s_barrier")
    tile_compute(1)
    a(f"""
    v_lshrrev_b32 v12, 1, v2
    v_mul_u32_u24 v12, 7168, v12
    v_and_b32 v13, 1, v2
    v_lshl_add_u32 v12, v13, 4, v12
    v_lshl_add_u32 v12, v7, 1, v12
    s_mul_i32 s82, s84, 14336
    s_lshl_b32 s83, s85, 8
    s_add_u32 s82, s82, s83
    s_sub_u32 s83, s3, 1
    s_lshl_b32 s83, s83, 17
    s_add_u32 s82, s82, s83
    s_add_u32 s82, s82, {WS_GP}
    """)
    exec_pat(0x00FF00FF)
    a(f"buffer_store_dwordx4 v[8:11], v12, {srd(SRD_WS)}, s82 offen sc1")
    exec_all()
    stamp(1)
    a("s_branch L_qgather")
    a.label("L_h12_skip")
    a("s_barrier")
    tags_ready()
    a("s_branch L_qgather")

    a.label("L_h3")
    a(f"""
    v_mov_b32 v8, -1
    v_lshlrev_b32 v9, 2, v0
    ds_write_b32 v9, v8 offset:{L_ML}
    s_waitcnt lgkmcnt(0)
    s_barrier
    """)
    tags_ready()

    a.label("L_qgather")
    a("s_cmp_ge_u32 s3, 2")
    a("s_cbranch_scc1 L_qdone")
    a(f"""
    s_lshr_b32 s82, s2, 7
    s_lshl_b32 s82, s82, 14
    s_bfe_u32 s83, s2, 0x30004
    s_lshl_b32 s83, s83, 11
    s_add_u32 s82, s82, s83
    s_lshl_b32 s83, s3, 10
    s_add_u32 s82, s82, s83
    s_add_u32 s82, s82, {WS_QP}
    s_add_u32 s83, s82, 32768
    s_add_u32 s84, s82, 65536
    s_add_u32 s85, s82, 98304
    s_mov_b32 s79, 0
    """)
    NATT = opts.get("natt", 3)
    def q_issue(bi):
        for ks in range(4):
            r = 16 + 16 * bi + 4 * ks
            a(f"buffer_load_dwordx4 v[{r}:{r+3}], v4, {srd(SRD_WS)}, s{82+ks} offen sc1")
    for bi in range(NATT):
        q_issue(bi)
        if bi < NATT - 1: a(f"s_sleep {opts.get('qsleep', 12)}")
    a.label("L_qloop")
    for bi in range(NATT):
        a(f"s_waitcnt vmcnt({4*(NATT-1)})")
        tagcheck([16 + 16 * bi + 4 * ks for ks in range(4)], 8, 9, 10)
        a(f"s_cbranch_vccz L_qok{bi}")
        q_issue(bi)
    a(f"""
    s_add_u32 s79, s79, 1
    s_cmp_lt_u32 s79, {SPIN_MAX}
    s_cbranch_scc1 L_qloop
    """)
    for bi in range(NATT):
        a.label(f"L_qok{bi}")
        r = 16 + 16 * bi
        for m in range(4):
            a(f"v_add_f32 v{8+m}, v{r+m}, v{r+4+m}")
            a(f"v_add_f32 v{12+m}, v{r+8+m}, v{r+12+m}")
        if bi < NATT - 1: a("s_branch L_qsum")
    a.label("L_qsum")
    for m in range(4):
        a(f"v_add_f32 v{8+m}, v{8+m}, v{12+m}")
    a(f"""
    v_cvt_pk_bf16_f32 v8, v8, v9
    v_cvt_pk_bf16_f32 v9, v10, v11
    v_lshlrev_b32 v10, 3, v0
    s_lshl_b32 s82, s3, 9
    v_add_u32 v10, s82, v10
    ds_write_b64 v10, v[8:9] offset:{L_Q}
    s_waitcnt lgkmcnt(0)
    """)
    a.label("L_qdone")
    stamp(2)
    a("s_barrier")

    a("s_waitcnt vmcnt(0)")
    a("v_mov_b32 v8, 0")
    a("v_mov_b32 v9, 0")
    for m in range(4):
        a(f"v_dot2_f32_bf16 v8, v{152+m}, v{160+m}, v8")
        a(f"v_dot2_f32_bf16 v9, v{156+m}, v{160+m}, v9")
    a("s_nop 3")
    rowreduce([8, 9], "v_add_f32")
    xrow_reduce([8, 9], "v_add_f32", [10, 11])
    a("""
    v_mul_f32 v8, 0xbfb8aa3b, v8
    v_mul_f32 v9, 0xbfb8aa3b, v9
    v_exp_f32 v8, v8
    v_exp_f32 v9, v9
    v_add_f32 v8, 1.0, v8
    v_add_f32 v9, 1.0, v9
    v_rcp_f32 v150, v8
    v_rcp_f32 v151, v9
    """)
    a("v_mov_b32 v149, 0")
    a("s_cmp_lt_u32 s2, 32")
    a("s_cbranch_scc1 L_ffn_done")
    a(f"""
    v_and_b32 v8, 7, v0
    v_mul_u32_u24 v8, 14336, v8
    v_bfe_u32 v9, v0, 3, 1
    v_lshl_add_u32 v8, v9, 4, v8
    v_bfe_u32 v9, v0, 4, 1
    v_mul_u32_u24 v9, 7168, v9
    v_add_u32 v8, v8, v9
    v_lshrrev_b32 v9, 5, v0
    v_lshlrev_b32 v9, 17, v9
    v_add_u32 v8, v8, v9
    s_sub_u32 s82, s2, 32
    s_lshl_b32 s82, s82, 5
    s_add_u32 s82, s82, {WS_GP}
    s_mov_b32 s79, 0
    """)
    assert WS_UP - WS_GP == 1 << 17
    a.label("L_ffn_loop")
    a(f"buffer_load_dwordx4 v[16:19], v8, {srd(SRD_WS)}, s82 offen sc1")
    a("s_waitcnt vmcnt(0)")
    tagcheck([16], 9, 10, 11)
    a("s_cbranch_vccz L_ffn_ok")
    a(f"""
    s_add_u32 s79, s79, 1
    s_cmp_lt_u32 s79, {SPIN_MAX}
    s_cbranch_scc1 L_ffn_loop
    """)
    a.label("L_ffn_ok")
    for ctl in ("quad_perm:[1,0,3,2]", "quad_perm:[2,3,0,1]", "row_half_mirror"):
        for m in range(4):
            a(f"v_add_f32_dpp v{16+m}, v{16+m}, v{16+m} {ctl} row_mask:0xf bank_mask:0xf")
    for m in range(4): a(f"v_mov_b32 v{20+m}, v{16+m}")
    for m in range(4): a(f"v_permlane32_swap_b32 v{16+m}, v{20+m}")
    for m in range(4): a(f"v_mul_f32 v{24+m}, 0xbfb8aa3b, v{16+m}")
    for m in range(4): a(f"v_exp_f32 v{24+m}, v{24+m}")
    for m in range(4): a(f"v_add_f32 v{24+m}, 1.0, v{24+m}")
    for m in range(4): a(f"v_rcp_f32 v{24+m}, v{24+m}")
    for m in range(4): a(f"v_mul_f32 v{16+m}, v{16+m}, v{20+m}")
    for m in range(4): a(f"v_mul_f32 v{16+m}, v{16+m}, v{24+m}")
    a(f"""
    v_and_b32 v9, 16, v0
    v_cmp_ne_u32 vcc, 0, v9
    v_cndmask_b32 v9, v150, v151, vcc
    v_sub_f32 v9, 1.0, v9
    """)
    for m in range(4): a(f"v_mul_f32 v{16+m}, v{16+m}, v9")
    a(f"""
    v_lshrrev_b32 v9, 3, v0
    v_lshlrev_b32 v9, 4, v9
    s_lshl_b32 s82, s3, 6
    v_add_u32 v9, s82, v9
    s_mov_b32 exec_lo, 0x01010101
    s_mov_b32 exec_hi, 0
    ds_write_b128 v9, v[16:19] offset:{L_H}
    s_mov_b64 exec, -1
    v_and_b32 v9, 1, v1
    v_lshlrev_b32 v9, 5, v9
    v_lshl_add_u32 v9, v2, 2, v9
    v_add_u32 v9, s82, v9
    s_waitcnt lgkmcnt(0)
    ds_read_b32 v10, v9 offset:{L_H}
    ds_read_b32 v11, v9 offset:{L_H+16}
    s_waitcnt lgkmcnt(0)
    v_cvt_pk_bf16_f32 v149, v10, v11
    """)
    a.label("L_ffn_done")
    stamp(3)

    WC, TC = 80, 112
    mk_srd(SRD_WO, 60, 4194304)
    mk_srd(SRD_WD, 68, 1835008)
    a(f"""
    v_lshlrev_b32 v8, 15, v2
    v_lshl_add_u32 v8, v1, 4, v8
    v_lshlrev_b32 v9, 10, v2
    v_lshl_add_u32 v9, v1, 4, v9
    s_lshr_b32 s82, s2, 3
    s_lshl_b32 s82, s82, 17
    s_and_b32 s83, s2, 7
    s_lshl_b32 s83, s83, 10
    s_add_u32 s82, s82, s83
    s_lshl_b32 s83, s3, 8
    s_add_u32 s82, s82, s83
    s_max_u32 s84, s2, 32
    s_sub_u32 s84, s84, 32
    s_lshl_b32 s84, s84, 13
    s_add_u32 s84, s84, s83
    s_add_u32 s85, s84, 4096
    """)
    for e in range(4):
        a(f"buffer_load_dwordx4 v[{WC+4*e}:{WC+4*e+3}], v8, {srd(SRD_WO)}, s82 offen nt")
        if e < 3: a("s_add_u32 s82, s82, 8192")
    a(f"buffer_load_dwordx4 v[{WC+16}:{WC+19}], v9, {srd(SRD_WD)}, s84 offen nt")
    a(f"buffer_load_dwordx4 v[{WC+20}:{WC+23}], v9, {srd(SRD_WD)}, s85 offen nt")

    a(f"""
    v_bfe_u32 v8, v0, 2, 2
    v_lshlrev_b32 v8, 3, v8
    s_mov_b32 s79, 0
    """)
    a.label("L_ml_loop")
    for x in range(8):
        a(f"ds_read_b64 v[{16+2*x}:{17+2*x}], v8 offset:{L_ML+32*x}")
    a("s_waitcnt lgkmcnt(0)")
    a("v_max_u32 v9, v16, v17")
    for x in range(1, 8):
        a(f"v_max3_u32 v9, v9, v{16+2*x}, v{17+2*x}")
    a("v_cmp_eq_u32 vcc, -1, v9")
    a("s_cbranch_vccz L_ml_ok")
    a(f"""
    s_sleep 1
    s_add_u32 s79, s79, 1
    s_cmp_lt_u32 s79, {SPIN_MAX*8}
    s_cbranch_scc1 L_ml_loop
    """)
    a.label("L_ml_ok")
    a("v_max3_f32 v9, v16, v18, v20")
    a("v_max3_f32 v9, v9, v22, v24")
    a("v_max3_f32 v9, v9, v26, v28")
    a("v_max_f32 v9, v9, v30")
    FAC = 40
    for x in range(8): a(f"v_sub_f32 v{FAC+x}, v{16+2*x}, v9")
    for x in range(8): a(f"v_exp_f32 v{FAC+x}, v{FAC+x}")
    a(f"v_mul_f32 v10, v{FAC}, v17")
    for x in range(1, 8): a(f"v_fmac_f32 v10, v{FAC+x}, v{17+2*x}")
    a("s_cmp_lg_u32 s3, 0")
    a("s_cbranch_scc1 L_st_skip")
    a(f"""
    v_and_or_b32 v12, v9, v3, s48
    v_and_or_b32 v13, v10, v3, s49
    v_mov_b32 v14, s50
    v_mov_b32 v15, s51
    v_lshlrev_b32 v11, 2, v0
    s_lshl_b32 s82, s2, 6
    s_add_u32 s82, s82, {WS_ST}
    s_mov_b32 exec_lo, 0x1111
    s_mov_b32 exec_hi, 0
    buffer_store_dwordx4 v[12:15], v11, {srd(SRD_WS)}, s82 offen sc1
    s_mov_b64 exec, -1
    """)
    a.label("L_st_skip")
    stamp(4)
    a(f"""
    v_and_b32 v8, 1, v1
    v_lshlrev_b32 v8, 13, v8
    v_lshrrev_b32 v9, 1, v1
    v_lshl_add_u32 v8, v9, 6, v8
    s_lshr_b32 s82, s2, 5
    s_lshl_b32 s82, s82, 10
    s_bfe_u32 s83, s2, 0x20003
    s_lshl_b32 s83, s83, 4
    s_add_u32 s82, s82, s83
    s_add_u32 s82, s82, {WS_ST}
    s_mov_b32 s79, 0
    """)
    a.label("L_st_loop")
    a(f"buffer_load_dwordx4 v[16:19], v8, {srd(SRD_WS)}, s82 offen sc1")
    a(f"buffer_load_dwordx4 v[20:23], v8, {srd(SRD_WS)}, s82 offen offset:512 sc1")
    a("s_waitcnt vmcnt(0)")
    tagcheck([16, 20], 9, 10, 11)
    a("s_cbranch_vccz L_st_ok")
    a(f"""
    s_add_u32 s79, s79, 1
    s_cmp_lt_u32 s79, {SPIN_MAX}
    s_cbranch_scc1 L_st_loop
    """)
    a.label("L_st_ok")
    a("""
    v_and_b32 v16, v3, v16
    v_and_b32 v20, v3, v20
    v_max_f32 v9, v16, v20
    """)
    rowreduce([9], "v_max_f32", (8, 4, 2))
    a("""
    v_sub_f32 v16, v16, v9
    v_sub_f32 v20, v20, v9
    v_exp_f32 v16, v16
    v_exp_f32 v20, v20
    v_mul_f32 v10, v16, v17
    v_fmac_f32 v10, v20, v21
    """)
    rowreduce([10], "v_add_f32", (8, 4, 2))
    a("""
    v_rcp_f32 v10, v10
    v_and_b32 v11, 1, v1
    v_cmp_ne_u32 vcc, 0, v11
    v_cndmask_b32 v11, v150, v151, vcc
    v_mul_f32 v10, v10, v11
    v_mul_f32 v147, v16, v10
    v_mul_f32 v148, v20, v10
    """)
    transpose(WC, TC, 6)
    for dd in range(8): a(f"v_mov_b32 v{TC+4*dd+3}, 0")
    a(f"""
    v_and_b32 v8, 1, v1
    v_lshlrev_b32 v8, 18, v8
    v_lshrrev_b32 v9, 1, v1
    v_lshl_add_u32 v8, v9, 11, v8
    v_lshl_add_u32 v8, v2, 4, v8
    s_lshr_b32 s82, s2, 5
    s_lshl_b32 s82, s82, 15
    s_and_b32 s83, s2, 7
    s_lshl_b32 s83, s83, 8
    s_add_u32 s82, s82, s83
    s_bfe_u32 s83, s2, 0x20003
    s_lshl_b32 s83, s83, 6
    s_add_u32 s82, s82, s83
    s_add_u32 s82, s82, {WS_OP}
    s_add_u32 s83, s82, 16384
    s_lshl_b32 s84, s3, 10
    v_add_u32 v9, s84, v4
    s_lshl_b32 s84, s2, 11
    s_add_u32 s84, s84, {WS_OP}
    v_mov_b32 v146, 0
    """)
    stamp(5)
    a("s_barrier")
    a("s_cmp_ge_u32 s3, 2")
    a("s_cbranch_scc1 L_ored_done")
    for x in range(8):
        a(f"ds_read_b128 v[{48+4*x}:{51+4*x}], v9 offset:{L_O+2048*x}")
    for x in range(8):
        a(f"s_waitcnt lgkmcnt({7-x})")
        for m in range(4):
            if x == 0: a(f"v_mul_f32 v{12+m}, v{FAC}, v{48+m}")
            else: a(f"v_fmac_f32 v{12+m}, v{FAC+x}, v{48+4*x+m}")
    for m in range(4): a(f"v_and_or_b32 v{12+m}, v{12+m}, v3, s{S_T0+m}")
    a(f"buffer_store_dwordx4 v[12:15], v9, {srd(SRD_WS)}, s84 offen sc1")
    a.label("L_ored_done")
    a("s_mov_b32 s79, 0")
    a.label("L_o_loop")
    a(f"buffer_load_dwordx4 v[16:19], v8, {srd(SRD_WS)}, s82 offen sc1")
    a(f"buffer_load_dwordx4 v[20:23], v8, {srd(SRD_WS)}, s83 offen sc1")
    a("s_waitcnt vmcnt(0)")
    tagcheck([16, 20], 24, 25, 26)
    a("s_cbranch_vccz L_o_ok")
    a(f"""
    s_add_u32 s79, s79, 1
    s_cmp_lt_u32 s79, {SPIN_MAX}
    s_cbranch_scc1 L_o_loop
    """)
    a.label("L_o_ok")
    stamp(6)
    for m in range(4): a(f"v_mul_f32 v{16+m}, v147, v{16+m}")
    for m in range(4): a(f"v_fmac_f32 v{16+m}, v148, v{20+m}")
    rowreduce([16, 17, 18, 19], "v_add_f32", (8, 4, 2))
    a("v_cvt_pk_bf16_f32 v144, v16, v17")
    a("v_cvt_pk_bf16_f32 v145, v18, v19")
    a("v_mov_b32 v146, v149")
    a("v_mov_b32 v147, 0")
    D = 48
    for dd in range(8):
        a(f"v_mfma_f32_16x16x32_bf16 v[{D+4*dd}:{D+4*dd+3}], v[144:147], v[{TC+4*dd}:{TC+4*dd+3}], 0")
    a(f"""
    v_lshrrev_b32 v12, 1, v2
    v_lshlrev_b32 v12, 11, v12
    v_and_b32 v13, 1, v2
    v_lshl_add_u32 v12, v13, 4, v12
    v_lshl_add_u32 v12, v1, 5, v12
    s_lshl_b32 s82, s2, 12
    s_lshl_b32 s83, s3, 9
    s_add_u32 s82, s82, s83
    s_add_u32 s82, s82, {WS_YP}
    """)
    for G in range(4):
        b, half = G >> 1, G & 1
        exec_rows(G)
        for m in range(4):
            a(f"v_and_or_b32 v{8+m}, v{D+4*(4*half+m)+b}, v3, s{S_T0+m}")
    exec_all()
    a(f"buffer_store_dwordx4 v[8:11], v12, {srd(SRD_WS)}, s82 offen sc1")
    stamp(7)
    a("s_branch L_fin")

    a.label("L_attn")
    KR, VR, QB, SR, PR = 16, 48, 80, 96, 104
    mk_srd(SRD_K, 54, 134217728)
    mk_srd(SRD_V, 56, 134217728)
    a("""
    s_sub_u32 s3, s3, 4
    s_lshr_b32 s82, s2, 4
    s_lshl_b32 s82, s82, 23
    s_add_u32 s82, s82, 0x700000
    s_and_b32 s83, s2, 15
    s_lshl_b32 s83, s83, 16
    s_add_u32 s82, s82, s83
    s_lshl_b32 s83, s3, 13
    s_add_u32 s82, s82, s83
    s_add_u32 s83, s82, 4096
    v_lshlrev_b32 v4, 8, v1
    v_lshl_add_u32 v4, v2, 4, v4
    v_lshlrev_b32 v5, 10, v2
    v_lshl_add_u32 v5, v1, 4, v5
    """)
    tags_ready()
    a("s_barrier")
    for T in range(2):
        for jj in range(4):
            r = KR + 4 * (4 * T + jj)
            a(f"buffer_load_dwordx4 v[{r}:{r+3}], v4, {srd(SRD_K)}, s{82+T} offen offset:{64*jj} nt")
    for e in range(8):
        r = VR + 4 * e
        a(f"buffer_load_dwordx4 v[{r}:{r+3}], v5, {srd(SRD_V)}, s{82+(e>>2)} offen offset:{256*(e&3)} nt")
    stamp(1)
    a(f"""
    v_and_b32 v6, 3, v1
    v_lshlrev_b32 v6, 8, v6
    v_lshl_add_u32 v6, v2, 4, v6
    """)
    a("s_barrier")
    stamp(2)
    for jj in range(4):
        a(f"ds_read_b128 v[{QB+4*jj}:{QB+4*jj+3}], v6 offset:{L_Q+64*jj}")
    a("s_waitcnt vmcnt(8) lgkmcnt(0)")
    stamp(3)
    for jj in range(4):
        for T in range(2):
            c = f"v[{SR+4*T}:{SR+4*T+3}]" if jj else "0"
            r = KR + 4 * (4 * T + jj)
            a(f"v_mfma_f32_16x16x32_bf16 v[{SR+4*T}:{SR+4*T+3}], v[{r}:{r+3}], v[{QB+4*jj}:{QB+4*jj+3}], {c}")
    a("s_mov_b32 s84, 0x3e0293ee")
    for x in range(8): a(f"v_mul_f32 v{SR+x}, s84, v{SR+x}")
    a(f"v_max3_f32 v8, v{SR}, v{SR+1}, v{SR+2}")
    a(f"v_max3_f32 v8, v8, v{SR+3}, v{SR+4}")
    a(f"v_max3_f32 v8, v8, v{SR+5}, v{SR+6}")
    a(f"v_max_f32 v8, v8, v{SR+7}")
    xrow_reduce([8], "v_max_f32", [10])
    a("v_and_b32 v8, v3, v8")
    for x in range(8): a(f"v_sub_f32 v{SR+x}, v{SR+x}, v8")
    for x in range(8): a(f"v_exp_f32 v{SR+x}, v{SR+x}")
    a(f"v_add_f32 v9, v{SR}, v{SR+1}")
    for x in range(2, 8): a(f"v_add_f32 v9, v9, v{SR+x}")
    for x in range(4): a(f"v_cvt_pk_bf16_f32 v{PR+x}, v{SR+2*x}, v{SR+2*x+1}")
    xrow_reduce([9], "v_add_f32", [10])
    a(f"""
    v_lshlrev_b32 v10, 3, v0
    s_lshl_b32 s84, s3, 5
    v_add_u32 v10, s84, v10
    s_mov_b32 exec_lo, 0xf
    s_mov_b32 exec_hi, 0
    ds_write_b64 v10, v[8:9] offset:{L_ML}
    s_mov_b64 exec, -1
    v_lshlrev_b32 v10, 6, v1
    v_lshl_add_u32 v10, v2, 4, v10
    s_lshl_b32 s84, s3, 11
    v_add_u32 v10, s84, v10
    """)
    stamp(4)
    a("s_waitcnt vmcnt(0)")
    stamp(5)
    transpose(VR, KR)
    for dd in range(8):
        a(f"v_mfma_f32_16x16x32_bf16 v[{VR+4*dd}:{VR+4*dd+3}], v[{KR+4*dd}:{KR+4*dd+3}], v[{PR}:{PR+3}], 0")
    exec_pat(0x000F000F)
    for dd in range(8):
        a(f"ds_write_b128 v10, v[{VR+4*dd}:{VR+4*dd+3}] offset:{L_O+256*dd}")
    exec_all()
    a("s_waitcnt lgkmcnt(0)")
    a("s_barrier")
    stamp(6)
    a("s_add_u32 s3, s3, 4")
    a("s_cmp_lg_u32 s3, 4")
    a("s_cbranch_scc1 L_fin")
    mk_srd(SRD_OUT, 72, 2048)
    a(f"""
    v_lshlrev_b32 v4, 12, v0
    s_lshl_b32 s82, s2, 4
    s_add_u32 s82, s82, {WS_YP}
    s_add_u32 s83, s82, 0x40000
    s_add_u32 s84, s82, 0x80000
    s_add_u32 s85, s82, 0xc0000
    s_mov_b32 s79, 0
    """)
    a.label("L_y_loop")
    for i in range(4):
        a(f"buffer_load_dwordx4 v[{16+4*i}:{19+4*i}], v4, {srd(SRD_WS)}, s{82+i} offen sc1")
    a("s_waitcnt vmcnt(0)")
    tagcheck([16, 20, 24, 28], 8, 9, 10)
    a("s_cbranch_vccz L_y_ok")
    a(f"""
    s_add_u32 s79, s79, 1
    s_cmp_lt_u32 s79, {SPIN_MAX}
    s_cbranch_scc1 L_y_loop
    """)
    a.label("L_y_ok")
    for m in range(4):
        a(f"v_add_f32 v{16+m}, v{16+m}, v{20+m}")
        a(f"v_add_f32 v{24+m}, v{24+m}, v{28+m}")
    for m in range(4): a(f"v_add_f32 v{16+m}, v{16+m}, v{24+m}")
    rowreduce([16, 17, 18, 19], "v_add_f32")
    xrow_reduce([16, 17, 18, 19], "v_add_f32", [20, 21, 22, 23])
    a(f"""
    v_cvt_pk_bf16_f32 v16, v16, v17
    v_cvt_pk_bf16_f32 v17, v18, v19
    v_mov_b32 v4, 0
    s_lshl_b32 s82, s2, 3
    s_mov_b32 exec_lo, 1
    s_mov_b32 exec_hi, 0
    buffer_store_dwordx2 v[16:17], v4, {srd(SRD_OUT)}, s82 offen
    s_cmp_lg_u32 s2, 0
    s_cbranch_scc1 L_noepoch
    s_add_u32 s82, s78, 1
    v_mov_b32 v5, s82
    buffer_store_dword v5, v4, {srd(SRD_WS)}, 0 offen sc1
    """)
    a.label("L_noepoch")
    exec_all()
    stamp(7)
    a.label("L_fin")
    if stamps and opts.get("dbg") is not None:
        a(f"""
        s_waitcnt lgkmcnt(0)
        s_cmp_lg_u32 s2, {opts['dbg']}
        s_cbranch_scc1 L_end
        s_and_b32 s82, s3, 3
        s_cmp_lg_u32 s82, 0
        s_cbranch_scc1 L_end
        s_cmp_gt_u32 s3, 4
        s_cbranch_scc1 L_end
        s_lshl_b32 s82, s3, 3
        v_mov_b32 v4, 0
        """)
        mk_srd(SRD_OUT, 74, 256)
        for i in range(8):
            a(f"s_sub_u32 s83, s{86+2*i}, s86")
            a(f"v_mov_b32 v{16+i}, s83")
        a("s_mov_b32 exec_lo, 1")
        a("s_mov_b32 exec_hi, 0")
        for i in range(2):
            a(f"buffer_store_dwordx4 v[{16+4*i}:{19+4*i}], v4, {srd(SRD_OUT)}, s82 offen offset:{16*i}")
    elif stamps:
        a(f"""
        s_waitcnt lgkmcnt(0)
        s_mul_i32 s82, s2, 12
        s_add_u32 s82, s82, s3
        s_lshl_b32 s82, s82, 6
        s_add_u32 s82, s82, {WS_STAMP}
        v_mov_b32 v4, 0
        """)
        for i in range(16): a(f"v_mov_b32 v{16+i}, s{86+i}")
        a("s_mov_b32 exec_lo, 1")
        a("s_mov_b32 exec_hi, 0")
        for i in range(4):
            a(f"buffer_store_dwordx4 v[{16+4*i}:{19+4*i}], v4, {srd(SRD_WS)}, s82 offen offset:{16*i}")
    a.label("L_end")
    a("s_endpgm")
    R('.section .rodata,"a"')
    R(".p2align 6")
    R(f".amdhsa_kernel {NAME}_kernel")
    R("  .amdhsa_next_free_vgpr 168")
    R("  .amdhsa_next_free_sgpr 102")
    R("  .amdhsa_accum_offset 168")
    R("  .amdhsa_group_segment_fixed_size 0")
    R("  .amdhsa_kernarg_size 104")
    R("  .amdhsa_user_sgpr_count 2")
    R("  .amdhsa_user_sgpr_kernarg_segment_ptr 1")
    R("  .amdhsa_system_sgpr_workgroup_id_x 1")
    R(".end_amdhsa_kernel")
    return a.text()

if __name__ == "__main__":
    open("v1.s", "w").write(gen(False))
    open("v1s.s", "w").write(gen(True))
    open("v1d.s", "w").write(gen(True, dict(dbg=100)))
```

```python
import sys
from asmlib import Asm
NAME = "gated_mix__sliding_block_cached__swiglu_ffn__decode"

WS_QP = 0x20000
WS_GP = 0x40000
WS_UP = 0x60000
WS_ST = 0x80000
WS_YP = 0xC0000
WS_OP = 0x100000
WS_STAMP = 0x10000000
L_Q = 0
L_ML = 1024
L_CNT = 1280
L_H = 1408
L_G = 1664
L_Y = 2048
L_O = 6144
LDS_BYTES = L_O + 8 * 2048
SPIN_MAX = 40000
NWAVES = 16

SRD_X, SRD_K, SRD_V, SRD_WQ, SRD_WO, SRD_WG, SRD_WU, SRD_WD, SRD_GW, SRD_OUT, SRD_WS = [4 + 4 * i for i in range(11)]
S_T0 = 48
S_SELLO, S_SELHI = 80, 81
def srd(b): return f"s[{b}:{b+3}]"

def gen(stamps=False, opts=None):
    opts = opts or {}
    b1_late = opts.get("b1_late", True)
    a = Asm()
    R = a.raw
    uid = [0]
    def U(p):
        uid[0] += 1
        return f"{p}_{uid[0]}"
    R(f"; @launch grid=(256,1,1) block=({64*NWAVES},1,1) lds={LDS_BYTES}")
    R('.amdgcn_target "amdgcn-amd-amdhsa--gfx950"')
    R(".text")
    R(f".globl {NAME}_kernel")
    R(".p2align 8")
    R(f".type {NAME}_kernel,@function")
    R(f"{NAME}_kernel:")
    def stamp(i):
        if stamps: a(f"s_memrealtime s[{86+2*i}:{87+2*i}]")
    def mk_srd(b, p, size):
        a(f"s_mov_b32 s{b}, s{p}")
        a(f"s_and_b32 s{b+1}, s{p+1}, 0xffff")
        a(f"s_mov_b32 s{b+2}, {size}")
        a(f"s_mov_b32 s{b+3}, 0x20000")
    def exec_set(lo, hi):
        a(f"s_mov_b32 exec_lo, {lo:#x}")
        a(f"s_mov_b32 exec_hi, {hi:#x}")
    def exec_rows(G):
        exec_set((0xFFFF << (16 * G)) & 0xFFFFFFFF if G < 2 else 0, (0xFFFF << (16 * (G - 2))) & 0xFFFFFFFF if G >= 2 else 0)
    def exec_all(): a("s_mov_b64 exec, -1")
    def tagcheck(regs, acc, t0, t1):
        first = True
        for q in regs:
            for h in range(2):
                a(f"v_xor_b32 v{t0}, s{S_T0+2*h}, v{q+2*h}")
                a(f"v_xor_b32 v{t1}, s{S_T0+2*h+1}, v{q+2*h+1}")
                if first:
                    a(f"v_or_b32 v{acc}, v{t0}, v{t1}"); first = False
                else:
                    a(f"v_or3_b32 v{acc}, v{acc}, v{t0}, v{t1}")
        a(f"v_and_b32 v{acc}, 0xff, v{acc}")
        a(f"v_cmp_ne_u32 vcc, 0, v{acc}")
    def poll(loads, regs, tmps, sleep=None):
        lp, ok = U("L_poll"), U("L_pok")
        if sleep is None: sleep = opts.get("psleep", 2)
        a("s_mov_b32 s79, 0")
        a.label(lp)
        for l in loads: a(l)
        a("s_waitcnt vmcnt(0)")
        tagcheck(regs, *tmps)
        a(f"s_cbranch_vccz {ok}")
        if opts.get("narrow", True): a("s_mov_b64 exec, vcc")
        if sleep: a(f"s_sleep {sleep}")
        a(f"s_add_u32 s79, s79, 1")
        a(f"s_cmp_lt_u32 s79, {SPIN_MAX}")
        a(f"s_cbranch_scc1 {lp}")
        a.label(ok)
        exec_all()
    def lds_wait(off, val, vt, sleep=0):
        lp, ok = U("L_lw"), U("L_lok")
        a("s_mov_b32 s79, 0")
        a(f"v_mov_b32 v{vt+1}, 0")
        a.label(lp)
        a(f"ds_read_b32 v{vt}, v{vt+1} offset:{off}")
        a("s_waitcnt lgkmcnt(0)")
        a(f"v_cmp_gt_u32 vcc, {val}, v{vt}")
        a(f"s_cbranch_vccz {ok}")
        if sleep: a(f"s_sleep {sleep}")
        a(f"s_add_u32 s79, s79, 1")
        a(f"s_cmp_lt_u32 s79, {SPIN_MAX*16}")
        a(f"s_cbranch_scc1 {lp}")
        a.label(ok)
    def lds_add(off, vt, rtn=False):
        a(f"v_mov_b32 v{vt}, 0")
        a(f"v_mov_b32 v{vt+1}, 1")
        exec_set(1, 0)
        if rtn:
            a(f"ds_add_rtn_u32 v{vt+1}, v{vt}, v{vt+1} offset:{off}")
            a("s_waitcnt lgkmcnt(0)")
            a(f"v_readfirstlane_b32 s79, v{vt+1}")
        else:
            a(f"ds_add_u32 v{vt}, v{vt+1} offset:{off}")
        exec_all()
    def wait_until(ticks):
        lp = U("L_wu")
        a(f"s_add_u32 s40, s40, {ticks}")
        a.label(lp)
        a("s_sleep 2")
        a("s_memrealtime s[42:43]")
        a("s_waitcnt lgkmcnt(0)")
        a("s_sub_u32 s42, s42, s40")
        a("s_cmp_lt_i32 s42, 0")
        a(f"s_cbranch_scc1 {lp}")
    def transpose(Rb, Tb, ne=8):
        for m in range(ne // 2):
            for p in range(4):
                a(f"v_perm_b32 v{Tb+4*(2*p)+m}, v{Rb+4*(2*m+1)+p}, v{Rb+4*(2*m)+p}, s{S_SELLO}")
                a(f"v_perm_b32 v{Tb+4*(2*p+1)+m}, v{Rb+4*(2*m+1)+p}, v{Rb+4*(2*m)+p}, s{S_SELHI}")
    def rowreduce(regs, op, rors=(8, 4, 2, 1)):
        for r in rors:
            for x in regs:
                a(f"{op}_dpp v{x}, v{x}, v{x} row_ror:{r} row_mask:0xf bank_mask:0xf")
    def xrow_reduce(regs, op, tmps):
        for sw in ("v_permlane16_swap_b32", "v_permlane32_swap_b32"):
            for x, t in zip(regs, tmps): a(f"v_mov_b32 v{t}, v{x}")
            for x, t in zip(regs, tmps): a(f"{sw} v{x}, v{t}")
            for x, t in zip(regs, tmps): a(f"{op} v{x}, v{x}, v{t}")
    def tags_ready():
        a("""
        s_waitcnt lgkmcnt(0)
        s_add_u32 s79, s78, 1
        s_mul_i32 s79, s79, 0x9E3779B1
        s_and_b32 s48, s79, 0xff
        s_bfe_u32 s49, s79, 0x80008
        s_bfe_u32 s50, s79, 0x80010
        s_lshr_b32 s51, s79, 24
        """)

    stamp(0)
    a("s_memrealtime s[40:41]")
    if stamps:
        for i in range(1, 8): a(f"s_mov_b64 s[{86+2*i}:{87+2*i}], 0")
    a("s_cmp_ge_u32 s2, 256")
    a("s_cbranch_scc1 L_end")
    a("""
    s_load_dwordx16 s[52:67], s[0:1], 0
    s_load_dwordx8 s[68:75], s[0:1], 64
    s_load_dwordx2 s[76:77], s[0:1], 96
    v_lshrrev_b32 v1, 6, v0
    v_and_b32 v0, 63, v0
    v_readfirstlane_b32 s3, v1
    v_and_b32 v1, 15, v0
    v_lshrrev_b32 v2, 4, v0
    v_mov_b32 v3, 0xffffff00
    v_lshlrev_b32 v4, 4, v0
    s_and_b32 s30, s2, 7
    s_lshr_b32 s31, s2, 5
    s_mov_b32 s80, 0x05040100
    s_mov_b32 s81, 0x07060302
    s_waitcnt lgkmcnt(0)
    s_load_dword s78, s[76:77], 0
    """)
    mk_srd(SRD_WS, 76, 0x20000000)
    a("s_cmp_ge_u32 s3, 12")
    a("s_cbranch_scc1 L_cw")
    a("s_cmp_ge_u32 s3, 4")
    a("s_cbranch_scc1 L_attn")
    a("s_cmp_eq_u32 s3, 3")
    a("s_cbranch_scc1 L_h3")

    mk_srd(SRD_X, 52, 2048)
    a("""
    v_and_b32 v5, 1, v1
    v_lshlrev_b32 v5, 10, v5
    v_bfe_u32 v6, v1, 1, 1
    v_lshl_add_u32 v5, v6, 6, v5
    v_lshl_add_u32 v5, v2, 4, v5
    v_lshrrev_b32 v6, 3, v1
    v_lshlrev_b32 v6, 2, v6
    v_add_u32 v6, v6, v2
    v_lshlrev_b32 v6, 3, v6
    v_and_b32 v7, 7, v1
    v_lshlrev_b32 v7, 4, v7
    """)
    a("s_cmp_eq_u32 s3, 0")
    a("s_cbranch_scc0 L_h12")
    W0, T0, ACC, XA = 16, 80, 16, 112
    def tile_loads(sr, stride, nblk):
        for t in range(nblk):
            a(f"buffer_load_dwordx4 v[{XA+4*t}:{XA+4*t+3}], v5, {srd(SRD_X)}, s83 offen offset:{128*t}")
        for t in range(nblk):
            for e in range(8):
                r = W0 + 4 * (8 * t + e)
                a(f"buffer_load_dwordx4 v[{r}:{r+3}], v8, {sr}, s82 offen nt")
                if not (t == nblk - 1 and e == 7):
                    a(f"s_add_u32 s82, s82, {stride if e < 7 else 57 * stride}")
    def tile_compute(nblk):
        stamp(3)
        for t in range(nblk):
            a(f"s_waitcnt vmcnt({8*(nblk-1-t)})")
            stamp(4 + t)
            if b1_late and t == nblk - 1: a("s_barrier")
            transpose(W0 + 32 * t, T0)
            for dd in range(8):
                c = f"v[{ACC+4*dd}:{ACC+4*dd+3}]" if t else "0"
                a(f"v_mfma_f32_16x16x32_bf16 v[{ACC+4*dd}:{ACC+4*dd+3}], v[{XA+4*t}:{XA+4*t+3}], v[{T0+4*dd}:{T0+4*dd+3}], {c}")
        stamp(6)
        for G in range(4):
            b, half = G >> 1, G & 1
            exec_rows(G)
            for m in range(4):
                d = ACC + 4 * (4 * half + m)
                a(f"v_add_f32_dpp v{8+m}, v{d+2+b}, v{d+b} row_ror:8 row_mask:0xf bank_mask:0xf")
        exec_all()
        tags_ready()
        for m in range(4):
            a(f"v_and_or_b32 v{8+m}, v{8+m}, v3, s{S_T0+m}")

    mk_srd(SRD_WQ, 58, 4194304)
    QMAP = """s_bfe_u32 s84, s2, 0x20003
    s_lshl_b32 s85, s30, 3
    s_add_u32 s85, s85, s31""" if opts.get("qlocal", True) else """s_and_b32 s84, s2, 3
    s_lshr_b32 s85, s2, 2"""
    a(f"""
    v_lshlrev_b32 v8, 13, v6
    v_add_u32 v8, v8, v7
    {QMAP}
    s_lshl_b32 s82, s84, 20
    s_lshl_b32 s83, s85, 7
    s_add_u32 s82, s82, s83
    s_lshl_b32 s83, s84, 8
    """)
    tile_loads(srd(SRD_WQ), 8192, 2)
    if not b1_late: a("s_barrier")
    if opts.get("so"):
        a("s_waitcnt vmcnt(0)"); stamp(1); lds_add(L_CNT + 28, 8); a("s_branch L_fin")
    tile_compute(2)
    a(f"""
    v_lshrrev_b32 v12, 1, v2
    v_lshlrev_b32 v12, 14, v12
    v_and_b32 v13, 1, v2
    v_lshl_add_u32 v12, v13, 4, v12
    v_lshl_add_u32 v12, v7, 1, v12
    s_lshl_b32 s82, s84, 15
    s_lshl_b32 s83, s85, 8
    s_add_u32 s82, s82, s83
    s_add_u32 s82, s82, {WS_QP}
    """)
    exec_set(0x00FF00FF, 0x00FF00FF)
    a(f"buffer_store_dwordx4 v[8:11], v12, {srd(SRD_WS)}, s82 offen sc1")
    exec_all()
    lds_add(L_CNT + 28, 8)
    stamp(1)
    a("s_branch L_qgather")

    a.label("L_h12")
    a("s_cmp_eq_u32 s3, 1")
    a("s_cbranch_scc1 L_h12a")
    mk_srd(SRD_GW, 70, 1024)
    a(f"""
    buffer_load_dwordx4 v[116:119], v4, {srd(SRD_X)}, 0 offen
    buffer_load_dwordx4 v[120:123], v4, {srd(SRD_X)}, 0 offen offset:1024
    buffer_load_dwordx4 v[124:127], v4, {srd(SRD_GW)}, 0 offen
    """)
    a.label("L_h12a")
    a("s_cmp_ge_u32 s2, 224")
    a("s_cbranch_scc1 L_h12_skip")
    a("""
    s_cmp_eq_u32 s3, 1
    s_cselect_b32 s24, s64, s66
    s_cselect_b32 s25, s65, s67
    s_and_b32 s25, s25, 0xffff
    s_mov_b32 s26, 1835008
    s_mov_b32 s27, 0x20000
    s_movk_i32 s82, 3584
    v_mul_lo_u32 v8, v6, s82
    v_add_u32 v8, v8, v7
    s_and_b32 s84, s2, 7
    s_lshr_b32 s85, s2, 3
    s_mul_i32 s82, s84, 229376
    s_lshl_b32 s83, s85, 7
    s_add_u32 s82, s82, s83
    s_lshl_b32 s83, s84, 7
    """)
    tile_loads(srd(SRD_WG), 3584, 1)
    if not b1_late: a("s_barrier")
    if opts.get("so"):
        a("s_waitcnt vmcnt(0)"); stamp(1); lds_add(L_CNT + 28, 8); a("s_branch L_fin")
    tile_compute(1)
    a(f"""
    v_lshrrev_b32 v12, 1, v2
    v_mul_u32_u24 v12, 7168, v12
    v_and_b32 v13, 1, v2
    v_lshl_add_u32 v12, v13, 4, v12
    v_lshl_add_u32 v12, v7, 1, v12
    s_mul_i32 s82, s84, 14336
    s_lshl_b32 s83, s85, 8
    s_add_u32 s82, s82, s83
    s_sub_u32 s83, s3, 1
    s_lshl_b32 s83, s83, 17
    s_add_u32 s82, s82, s83
    s_add_u32 s82, s82, {WS_GP}
    """)
    exec_set(0x00FF00FF, 0x00FF00FF)
    a(f"buffer_store_dwordx4 v[8:11], v12, {srd(SRD_WS)}, s82 offen sc1")
    exec_all()
    stamp(1)
    a("s_branch L_h12_done")
    a.label("L_h12_skip")
    a("s_barrier")
    tags_ready()
    a.label("L_h12_done")
    lds_add(L_CNT + 28, 8)
    if opts.get("so"): a("s_branch L_fin")
    a("s_cmp_eq_u32 s3, 2")
    a("s_cbranch_scc1 L_ffn")

    a.label("L_qgather")
    a(f"""
    s_and_b32 s82, s2, 15
    s_lshl_b32 s82, s82, 11
    s_lshl_b32 s83, s3, 10
    s_add_u32 s82, s82, s83
    s_add_u32 s82, s82, {WS_QP}
    s_add_u32 s83, s82, 32768
    s_add_u32 s84, s82, 65536
    s_add_u32 s85, s82, 98304
    s_mov_b32 s79, 0
    """)
    NATT = opts.get("natt", 2)
    def q_issue(bi):
        for ks in range(4):
            r = 16 + 16 * bi + 4 * ks
            a(f"buffer_load_dwordx4 v[{r}:{r+3}], v4, {srd(SRD_WS)}, s{82+ks} offen sc1")
    if opts.get("qdelay", 0): a(f"s_sleep {opts['qdelay']}")
    if opts.get("qat", 0): wait_until(opts["qat"])
    for bi in range(NATT):
        q_issue(bi)
        if bi < NATT - 1: a(f"s_sleep {opts.get('qsleep', 30)}")
    a.label("L_qloop")
    for bi in range(NATT):
        a(f"s_waitcnt vmcnt({4*(NATT-1)})")
        tagcheck([16 + 16 * bi + 4 * ks for ks in range(4)], 8, 9, 10)
        a(f"s_cbranch_vccz L_qok{bi}")
        q_issue(bi)
    a(f"""
    s_add_u32 s79, s79, 1
    s_cmp_lt_u32 s79, {SPIN_MAX}
    s_cbranch_scc1 L_qloop
    """)
    for bi in range(NATT):
        a.label(f"L_qok{bi}")
        r = 16 + 16 * bi
        for m in range(4):
            a(f"v_add_f32 v{8+m}, v{r+m}, v{r+4+m}")
            a(f"v_add_f32 v{12+m}, v{r+8+m}, v{r+12+m}")
        if bi < NATT - 1: a("s_branch L_qsum")
    a.label("L_qsum")
    for m in range(4):
        a(f"v_add_f32 v{8+m}, v{8+m}, v{12+m}")
    a(f"""
    v_cvt_pk_bf16_f32 v8, v8, v9
    v_cvt_pk_bf16_f32 v9, v10, v11
    v_lshlrev_b32 v10, 3, v0
    s_lshl_b32 s82, s3, 9
    v_add_u32 v10, s82, v10
    ds_write_b64 v10, v[8:9] offset:{L_Q}
    s_waitcnt lgkmcnt(0)
    """)
    lds_add(L_CNT, 8)
    stamp(2)
    a("s_branch L_fin")

    a.label("L_ffn")
    lds_add(L_CNT, 8)
    a(f"""
    v_and_b32 v8, 7, v0
    v_mul_u32_u24 v8, 14336, v8
    v_lshrrev_b32 v9, 3, v0
    v_lshl_add_u32 v8, v9, 4, v8
    s_mov_b32 s82, s30
    s_lshl_b32 s82, s82, 3
    s_mov_b32 s83, s31
    s_add_u32 s82, s82, s83
    s_mul_i32 s82, s82, 112
    s_add_u32 s82, s82, {WS_GP}
    s_add_u32 s83, s82, 7168
    s_add_u32 s84, s82, {WS_UP-WS_GP}
    s_add_u32 s85, s84, 7168
    s_waitcnt vmcnt(0)
    v_mov_b32 v12, 0
    v_mov_b32 v13, 0
    """)
    for m in range(4):
        a(f"v_dot2_f32_bf16 v12, v{116+m}, v{124+m}, v12")
        a(f"v_dot2_f32_bf16 v13, v{120+m}, v{124+m}, v13")
    a("s_nop 3")
    rowreduce([12, 13], "v_add_f32")
    xrow_reduce([12, 13], "v_add_f32", [10, 11])
    a("""
    v_mul_f32 v12, 0xbfb8aa3b, v12
    v_mul_f32 v13, 0xbfb8aa3b, v13
    v_exp_f32 v12, v12
    v_exp_f32 v13, v13
    v_add_f32 v12, 1.0, v12
    v_add_f32 v13, 1.0, v13
    v_rcp_f32 v12, v12
    v_rcp_f32 v13, v13
    """)
    if opts.get("qdelay", 0): a(f"s_sleep {opts['qdelay']}")
    if opts.get("hat", 0): wait_until(opts["hat"])
    for m in range(16): a(f"v_mov_b32 v{16+m}, 0")
    exec_set(0xFFFFFFFF, 0x00FFFFFF)
    poll([f"buffer_load_dwordx4 v[{16+4*x}:{19+4*x}], v8, {srd(SRD_WS)}, s{82+x} offen sc1" for x in range(4)],
         [16, 20, 24, 28], (9, 10, 11))
    exec_all()
    for ctl in ("quad_perm:[1,0,3,2]", "quad_perm:[2,3,0,1]", "row_half_mirror"):
        for m in range(16):
            a(f"v_add_f32_dpp v{16+m}, v{16+m}, v{16+m} {ctl} row_mask:0xf bank_mask:0xf")
    for m in range(8): a(f"v_mul_f32 v{32+m}, 0xbfb8aa3b, v{16+m}")
    for m in range(8): a(f"v_exp_f32 v{32+m}, v{32+m}")
    for m in range(8): a(f"v_add_f32 v{32+m}, 1.0, v{32+m}")
    for m in range(8): a(f"v_rcp_f32 v{32+m}, v{32+m}")
    for m in range(8): a(f"v_mul_f32 v{16+m}, v{16+m}, v{24+m}")
    for m in range(8): a(f"v_mul_f32 v{16+m}, v{16+m}, v{32+m}")
    a("v_sub_f32 v10, 1.0, v12")
    a("v_sub_f32 v11, 1.0, v13")
    for m in range(4): a(f"v_mul_f32 v{16+m}, v{16+m}, v10")
    for m in range(4): a(f"v_mul_f32 v{20+m}, v{20+m}, v11")
    a(f"""
    v_lshrrev_b32 v9, 3, v0
    v_lshlrev_b32 v9, 4, v9
    v_mov_b32 v14, 0
    """)
    exec_set(0x01010101, 0x01010101)
    a(f"ds_write_b128 v9, v[16:19] offset:{L_H}")
    a(f"ds_write_b128 v9, v[20:23] offset:{L_H+128}")
    exec_set(1, 0)
    a(f"ds_write_b64 v14, v[12:13] offset:{L_G}")
    exec_all()
    a("s_waitcnt lgkmcnt(0)")
    lds_add(L_CNT + 12, 8)
    stamp(2)
    a("s_branch L_fin")

    a.label("L_h3")
    a(f"""
    v_mov_b32 v8, -1
    v_lshlrev_b32 v9, 2, v0
    ds_write_b32 v9, v8 offset:{L_ML}
    v_mov_b32 v8, 0
    ds_write_b32 v9, v8 offset:{L_CNT}
    s_waitcnt lgkmcnt(0)
    s_barrier
    """)
    tags_ready()
    lds_add(L_CNT, 8)
    if opts.get("so"): a("s_branch L_fin")
    a("s_cmp_ge_u32 s2, 32")
    a("s_cbranch_scc1 L_fin")
    mk_srd(SRD_OUT, 72, 2048)
    a(f"""
    v_lshrrev_b32 v8, 3, v0
    v_lshlrev_b32 v8, 10, v8
    v_and_b32 v9, 7, v0
    v_lshl_add_u32 v8, v9, 4, v8
    s_lshr_b32 s82, s2, 3
    s_lshl_b32 s82, s82, 16
    s_and_b32 s83, s2, 7
    s_lshl_b32 s83, s83, 7
    s_add_u32 s82, s82, s83
    s_add_u32 s82, s82, {WS_YP}
    """)
    for i in range(1, 8): a(f"v_add_u32 v{48+i}, {8192*i}, v8")
    a("v_mov_b32 v48, v8")
    lds_wait(L_CNT + 8, 8, 10, sleep=4)
    stamp(1)
    poll([f"buffer_load_dwordx4 v[{16+4*i}:{19+4*i}], v{48+i}, {srd(SRD_WS)}, s82 offen sc1" for i in range(8)],
         [16 + 4 * i for i in range(8)], (9, 10, 11))
    stamp(2)
    for st in (4, 2, 1):
        for i in range(st):
            for m in range(4): a(f"v_add_f32 v{16+4*i+m}, v{16+4*i+m}, v{16+4*(i+st)+m}")
    rowreduce([16, 17, 18, 19], "v_add_f32", (8,))
    xrow_reduce([16, 17, 18, 19], "v_add_f32", [20, 21, 22, 23])
    a(f"""
    v_cvt_pk_bf16_f32 v16, v16, v17
    v_cvt_pk_bf16_f32 v17, v18, v19
    v_lshlrev_b32 v8, 3, v0
    s_bfe_u32 s82, s2, 0x10002
    s_lshl_b32 s82, s82, 10
    s_lshr_b32 s83, s2, 3
    s_lshl_b32 s83, s83, 8
    s_add_u32 s82, s82, s83
    s_and_b32 s83, s2, 3
    s_lshl_b32 s83, s83, 6
    s_add_u32 s82, s82, s83
    """)
    exec_set(0xFF, 0)
    a(f"buffer_store_dwordx2 v[16:17], v8, {srd(SRD_OUT)}, s82 offen")
    a("s_cmp_lg_u32 s2, 0")
    a("s_cbranch_scc1 L_noepoch")
    a(f"""
    s_add_u32 s82, s78, 1
    v_mov_b32 v5, s82
    v_mov_b32 v8, 0
    """)
    exec_set(1, 0)
    a(f"buffer_store_dword v5, v8, {srd(SRD_WS)}, 0 offen sc1")
    a.label("L_noepoch")
    exec_all()
    stamp(7)
    a("s_branch L_fin")

    a.label("L_cw")
    WC, TC, D, PL, AO = 16, 40, 72, 104, 112
    mk_srd(SRD_WO, 60, 4194304)
    mk_srd(SRD_WD, 68, 1835008)
    a(f"""
    s_sub_u32 s84, s3, 12
    v_lshlrev_b32 v8, 15, v2
    v_lshl_add_u32 v8, v1, 4, v8
    v_lshlrev_b32 v9, 10, v2
    v_lshl_add_u32 v9, v1, 4, v9
    s_mov_b32 s82, s30
    s_lshl_b32 s82, s82, 2
    s_add_u32 s82, s82, s84
    s_lshl_b32 s82, s82, 17
    s_mov_b32 s83, s31
    s_lshl_b32 s83, s83, 10
    s_add_u32 s82, s82, s83
    s_bfe_u32 s85, s2, 0x20003
    s_lshl_b32 s85, s85, 8
    s_add_u32 s82, s82, s85
    s_mov_b32 s83, s30
    s_lshl_b32 s83, s83, 3
    s_mov_b32 s79, s31
    s_add_u32 s83, s83, s79
    s_mul_i32 s83, s83, 28
    s_lshl_b32 s79, s84, 3
    s_add_u32 s83, s83, s79
    s_lshl_b32 s83, s83, 10
    s_add_u32 s83, s83, s85
    """)
    a("s_barrier")
    tags_ready()
    lds_add(L_CNT, 10)
    if opts.get("cgate", True): lds_wait(L_CNT + 24, 8, 10, sleep=4)
    for e in range(4):
        a(f"buffer_load_dwordx4 v[{WC+4*e}:{WC+4*e+3}], v8, {srd(SRD_WO)}, s82 offen nt")
        if e < 3: a("s_add_u32 s82, s82, 8192")
    a(f"buffer_load_dwordx4 v[{WC+16}:{WC+19}], v9, {srd(SRD_WD)}, s83 offen nt")
    a("s_add_u32 s83, s83, 4096")
    a(f"buffer_load_dwordx4 v[{WC+20}:{WC+23}], v9, {srd(SRD_WD)}, s83 offen nt")
    stamp(1)
    if opts.get("so"):
        a("s_waitcnt vmcnt(0)"); stamp(2); a("s_branch L_fin")
    lds_wait(L_CNT + 12, 1, 10, sleep=4)
    a(f"""
    v_and_b32 v8, 1, v1
    v_lshlrev_b32 v9, 2, v8
    v_lshlrev_b32 v8, 7, v8
    v_lshl_add_u32 v8, v2, 2, v8
    s_lshl_b32 s79, s84, 5
    v_add_u32 v8, s79, v8
    ds_read_b32 v10, v8 offset:{L_H}
    ds_read_b32 v11, v8 offset:{L_H+16}
    ds_read_b32 v118, v9 offset:{L_G}
    s_waitcnt lgkmcnt(0)
    v_cvt_pk_bf16_f32 v{AO+2}, v10, v11
    v_mov_b32 v{AO+3}, 0
    """)
    a(f"""
    v_and_b32 v8, 1, v1
    v_lshlrev_b32 v8, 7, v8
    v_lshrrev_b32 v9, 1, v1
    v_add_u32 v8, v8, v9
    v_lshlrev_b32 v9, 11, v8
    v_lshl_add_u32 v9, v2, 4, v9
    v_lshlrev_b32 v8, 10, v8
    s_mov_b32 s82, s30
    s_mov_b32 s83, s31
    s_lshl_b32 s85, s82, 14
    s_lshl_b32 s79, s83, 7
    s_add_u32 s85, s85, s79
    s_lshl_b32 s79, s84, 4
    s_add_u32 s85, s85, s79
    s_add_u32 s85, s85, {WS_ST}
    s_lshl_b32 s82, s82, 15
    s_lshl_b32 s83, s83, 8
    s_add_u32 s82, s82, s83
    s_lshl_b32 s79, s84, 6
    s_add_u32 s82, s82, s79
    s_add_u32 s82, s82, {WS_OP}
    s_add_u32 s83, s82, 16384
    s_add_u32 s28, s85, 8192
    """)
    a("s_waitcnt vmcnt(0)")
    stamp(2)
    transpose(WC, TC, 6)
    for dd in range(8): a(f"v_mov_b32 v{TC+4*dd+3}, 0")
    a(f"""
    v_lshrrev_b32 v12, 1, v2
    v_lshlrev_b32 v12, 9, v12
    v_and_b32 v13, 1, v2
    v_lshl_add_u32 v12, v13, 4, v12
    v_lshl_add_u32 v12, v1, 5, v12
    s_lshl_b32 s79, s84, 10
    v_add_u32 v13, s79, v12
    s_bfe_u32 s29, s2, 0x20003
    s_lshl_b32 s29, s29, 6
    s_mov_b32 s79, s30
    s_lshl_b32 s79, s79, 3
    s_add_u32 s29, s29, s79
    s_mov_b32 s79, s31
    s_add_u32 s29, s29, s79
    s_lshl_b32 s29, s29, 10
    s_add_u32 s29, s29, {WS_YP}
    """)
    poll([f"buffer_load_dwordx4 v[{PL}:{PL+3}], v8, {srd(SRD_WS)}, s85 offen sc1",
          f"buffer_load_dwordx4 v[{PL+4}:{PL+7}], v8, {srd(SRD_WS)}, s28 offen sc1"], [PL, PL + 4], (5, 6, 7))
    stamp(3)
    a(f"""
    v_and_b32 v{PL}, v3, v{PL}
    v_and_b32 v{PL+4}, v3, v{PL+4}
    v_max_f32 v5, v{PL}, v{PL+4}
    """)
    rowreduce([5], "v_max_f32", (8, 4, 2))
    a(f"""
    v_sub_f32 v116, v{PL}, v5
    v_sub_f32 v117, v{PL+4}, v5
    v_exp_f32 v116, v116
    v_exp_f32 v117, v117
    v_mul_f32 v6, v116, v{PL+1}
    v_fmac_f32 v6, v117, v{PL+5}
    """)
    rowreduce([6], "v_add_f32", (8, 4, 2))
    a("""
    v_rcp_f32 v6, v6
    v_mul_f32 v6, v6, v118
    v_mul_f32 v116, v116, v6
    v_mul_f32 v117, v117, v6
    """)
    poll([f"buffer_load_dwordx4 v[{PL}:{PL+3}], v9, {srd(SRD_WS)}, s82 offen sc1",
          f"buffer_load_dwordx4 v[{PL+4}:{PL+7}], v9, {srd(SRD_WS)}, s83 offen sc1"], [PL, PL + 4], (5, 6, 7))
    stamp(4)
    for m in range(4): a(f"v_mul_f32 v{PL+m}, v116, v{PL+m}")
    for m in range(4): a(f"v_fmac_f32 v{PL+m}, v117, v{PL+4+m}")
    rowreduce([PL, PL + 1, PL + 2, PL + 3], "v_add_f32", (8, 4, 2))
    a(f"v_cvt_pk_bf16_f32 v{AO}, v{PL}, v{PL+1}")
    a(f"v_cvt_pk_bf16_f32 v{AO+1}, v{PL+2}, v{PL+3}")
    for dd in range(8):
        a(f"v_mfma_f32_16x16x32_bf16 v[{D+4*dd}:{D+4*dd+3}], v[{AO}:{AO+3}], v[{TC+4*dd}:{TC+4*dd+3}], 0")
    for G in range(4):
        b, half = G >> 1, G & 1
        exec_rows(G)
        for m in range(4):
            a(f"v_mov_b32 v{16+m}, v{D+4*(4*half+m)+b}")
    exec_all()
    a(f"ds_write_b128 v13, v[16:19] offset:{L_Y}")
    a("s_waitcnt lgkmcnt(0)")
    lds_add(L_CNT + 16, 5, rtn=True)
    stamp(5)
    a("s_cmp_lg_u32 s79, 3")
    a("s_cbranch_scc1 L_fin")
    for x in range(4):
        a(f"ds_read_b128 v[{20+4*x}:{23+4*x}], v12 offset:{L_Y+1024*x}")
    a("s_waitcnt lgkmcnt(0)")
    for m in range(4):
        a(f"v_add_f32 v{20+m}, v{20+m}, v{24+m}")
        a(f"v_add_f32 v{28+m}, v{28+m}, v{32+m}")
    for m in range(4): a(f"v_add_f32 v{20+m}, v{20+m}, v{28+m}")
    for m in range(4): a(f"v_and_or_b32 v{20+m}, v{20+m}, v3, s{S_T0+m}")
    a(f"buffer_store_dwordx4 v[20:23], v12, {srd(SRD_WS)}, s29 offen sc1")
    stamp(6)
    a("s_branch L_fin")

    a.label("L_attn")
    KR, VR, QB, SR, PR, FAC = 16, 48, 80, 96, 104, 108
    mk_srd(SRD_K, 54, 134217728)
    mk_srd(SRD_V, 56, 134217728)
    a(f"""
    s_sub_u32 s84, s3, 4
    s_and_b32 s82, s2, 15
    s_lshr_b32 s83, s2, 4
    s_lshl_b32 s85, s82, 4
    s_add_u32 s85, s85, s83
    s_lshl_b32 s82, s82, 23
    s_add_u32 s82, s82, 0x700000
    s_lshl_b32 s83, s83, {13 if opts.get("sweep", True) else 16}
    s_add_u32 s82, s82, s83
    s_lshl_b32 s83, s84, {17 if opts.get("sweep", True) else 13}
    s_add_u32 s82, s82, s83
    s_add_u32 s83, s82, 4096
    v_lshlrev_b32 v5, 8, v1
    v_lshl_add_u32 v5, v2, 4, v5
    v_lshlrev_b32 v6, 10, v2
    v_lshl_add_u32 v6, v1, 4, v6
    """)
    a("s_barrier")
    kgate = opts.get("kgate", 8)
    if kgate < 8:
        a(f"s_cmp_lt_u32 s84, {kgate}")
        a("s_cbranch_scc1 L_kgo")
        lds_wait(L_CNT + 28, 3, 8, sleep=1)
        a.label("L_kgo")
    for T in range(2):
        for jj in range(4):
            r = KR + 4 * (4 * T + jj)
            a(f"buffer_load_dwordx4 v[{r}:{r+3}], v5, {srd(SRD_K)}, s{82+T} offen offset:{64*jj} nt")
    if opts.get("kfirst", True):
        lds_add(L_CNT + 20, 8)
        lds_wait(L_CNT + 20, 8, 8, sleep=1)
    for e in range(8):
        r = VR + 4 * e
        a(f"buffer_load_dwordx4 v[{r}:{r+3}], v6, {srd(SRD_V)}, s{82+(e>>2)} offen offset:{256*(e&3)} nt")
    lds_add(L_CNT + 24, 8)
    stamp(1)
    if opts.get("so"):
        a("s_waitcnt vmcnt(8)"); stamp(3); a("s_waitcnt vmcnt(0)"); stamp(4); a("s_branch L_fin")
    tags_ready()
    a(f"""
    v_and_b32 v6, 3, v1
    v_lshlrev_b32 v6, 8, v6
    v_lshl_add_u32 v6, v2, 4, v6
    s_mov_b32 s28, 0
    """)
    lds_wait(L_CNT, 8, 8, sleep=2)
    stamp(2)
    for jj in range(4):
        a(f"ds_read_b128 v[{QB+4*jj}:{QB+4*jj+3}], v6 offset:{L_Q+64*jj}")
    a("s_waitcnt vmcnt(8) lgkmcnt(0)")
    stamp(3)
    for jj in range(4):
        for T in range(2):
            c = f"v[{SR+4*T}:{SR+4*T+3}]" if jj else "0"
            r = KR + 4 * (4 * T + jj)
            a(f"v_mfma_f32_16x16x32_bf16 v[{SR+4*T}:{SR+4*T+3}], v[{r}:{r+3}], v[{QB+4*jj}:{QB+4*jj+3}], {c}")
    a("s_mov_b32 s79, 0x3e0293ee")
    for x in range(8): a(f"v_mul_f32 v{SR+x}, s79, v{SR+x}")
    a(f"v_max3_f32 v8, v{SR}, v{SR+1}, v{SR+2}")
    a(f"v_max3_f32 v8, v8, v{SR+3}, v{SR+4}")
    a(f"v_max3_f32 v8, v8, v{SR+5}, v{SR+6}")
    a(f"v_max_f32 v8, v8, v{SR+7}")
    xrow_reduce([8], "v_max_f32", [10])
    a("v_and_b32 v8, v3, v8")
    for x in range(8): a(f"v_sub_f32 v{SR+x}, v{SR+x}, v8")
    for x in range(8): a(f"v_exp_f32 v{SR+x}, v{SR+x}")
    a(f"v_add_f32 v9, v{SR}, v{SR+1}")
    for x in range(2, 8): a(f"v_add_f32 v9, v9, v{SR+x}")
    for x in range(4): a(f"v_cvt_pk_bf16_f32 v{PR+x}, v{SR+2*x}, v{SR+2*x+1}")
    xrow_reduce([9], "v_add_f32", [10])
    a(f"""
    v_lshlrev_b32 v10, 3, v0
    s_lshl_b32 s79, s84, 5
    v_add_u32 v10, s79, v10
    """)
    exec_set(0xF, 0)
    a(f"ds_write_b64 v10, v[8:9] offset:{L_ML}")
    exec_all()
    a("s_waitcnt lgkmcnt(0)")
    lds_add(L_CNT + 4, 10, rtn=True)
    def ml_read(vaddr):
        for x in range(8):
            a(f"ds_read_b64 v[{QB+2*x}:{QB+2*x+1}], v{vaddr} offset:{L_ML+32*x}")
        a("s_waitcnt lgkmcnt(0)")
        a(f"v_max3_f32 v9, v{QB}, v{QB+2}, v{QB+4}")
        a(f"v_max3_f32 v9, v9, v{QB+6}, v{QB+8}")
        a(f"v_max3_f32 v9, v9, v{QB+10}, v{QB+12}")
        a(f"v_max_f32 v9, v9, v{QB+14}")
        for x in range(8): a(f"v_sub_f32 v{FAC+x}, v{QB+2*x}, v9")
        for x in range(8): a(f"v_exp_f32 v{FAC+x}, v{FAC+x}")
    def factors():
        a("v_lshlrev_b32 v8, 3, v2")
        ml_read(8)
        a("s_mov_b32 s28, 1")
    a("s_cmp_lg_u32 s79, 7")
    a("s_cbranch_scc1 L_nostats")
    a("v_and_b32 v8, 3, v0")
    a("v_lshlrev_b32 v8, 3, v8")
    ml_read(8)
    a(f"v_mul_f32 v10, v{FAC}, v{QB+1}")
    for x in range(1, 8): a(f"v_fmac_f32 v10, v{FAC+x}, v{QB+2*x+1}")
    a(f"""
    v_and_or_b32 v12, v9, v3, s48
    v_and_or_b32 v13, v10, v3, s49
    v_mov_b32 v14, s50
    v_mov_b32 v15, s51
    v_lshrrev_b32 v11, 2, v0
    v_lshlrev_b32 v11, 7, v11
    v_lshl_add_u32 v11, v8, 1, v11
    s_lshl_b32 s79, s85, 10
    s_add_u32 s79, s79, {WS_ST}
    """)
    exec_set(0xFFFFFFFF, 0)
    a(f"buffer_store_dwordx4 v[12:15], v11, {srd(SRD_WS)}, s79 offen sc1")
    exec_all()
    factors()
    a("s_waitcnt vmcnt(1)")
    a("s_branch L_vready")
    a.label("L_nostats")
    a("s_waitcnt vmcnt(0)")
    a.label("L_vready")
    stamp(4)
    a(f"""
    v_lshlrev_b32 v10, 6, v1
    v_lshl_add_u32 v10, v2, 4, v10
    s_lshl_b32 s79, s84, 11
    v_add_u32 v10, s79, v10
    """)
    transpose(VR, KR)
    for dd in range(8):
        a(f"v_mfma_f32_16x16x32_bf16 v[{VR+4*dd}:{VR+4*dd+3}], v[{KR+4*dd}:{KR+4*dd+3}], v[{PR}:{PR+3}], 0")
    exec_set(0x000F000F, 0x000F000F)
    for dd in range(8):
        a(f"ds_write_b128 v10, v[{VR+4*dd}:{VR+4*dd+3}] offset:{L_O+256*dd}")
    exec_all()
    a("s_waitcnt lgkmcnt(0)")
    lds_add(L_CNT + 8, 10)
    stamp(5)
    a(f"""
    v_and_b32 v5, 3, v0
    v_lshlrev_b32 v5, 3, v5
    s_add_u32 s79, s78, 1
    s_mul_i32 s79, s79, 0x9E3779B1
    v_lshrrev_b32 v7, v5, s79
    v_and_b32 v7, 0xff, v7
    v_lshlrev_b32 v5, 2, v0
    s_lshl_b32 s79, s84, 8
    v_add_u32 v5, s79, v5
    s_lshl_b32 s29, s85, 11
    s_add_u32 s29, s29, {WS_OP}
    """)
    a("s_cmp_eq_u32 s28, 1")
    a("s_cbranch_scc1 L_facdone")
    lds_wait(L_CNT + 4, 8, 10)
    factors()
    a.label("L_facdone")
    lds_wait(L_CNT + 8, 8, 10)
    stamp(6)
    for x in range(8):
        a(f"ds_read_b32 v{QB+x}, v5 offset:{L_O+2048*x}")
    for x in range(8):
        a(f"s_waitcnt lgkmcnt({7-x})")
        if x == 0: a(f"v_mul_f32 v12, v{FAC}, v{QB}")
        else: a(f"v_fmac_f32 v12, v{FAC+x}, v{QB+x}")
    a("v_and_or_b32 v12, v12, v3, v7")
    a(f"buffer_store_dword v12, v5, {srd(SRD_WS)}, s29 offen sc1")
    stamp(7)

    a.label("L_fin")
    if stamps and opts.get("dbg") is not None:
        w0, w1, wg = opts["dbg"]
        a(f"""
        s_waitcnt lgkmcnt(0) vmcnt(0)
        s_cmp_lg_u32 s2, {wg}
        s_cbranch_scc1 L_end
        s_mov_b32 s82, 0
        s_cmp_eq_u32 s3, {w0}
        s_cbranch_scc1 L_dbg
        s_mov_b32 s82, 32
        s_cmp_lg_u32 s3, {w1}
        s_cbranch_scc1 L_end
        """)
        a.label("L_dbg")
        a("v_mov_b32 v4, 0")
        mk_srd(SRD_OUT, 74, 256)
        for i in range(8):
            a(f"s_sub_u32 s83, s{86+2*i}, s86")
            a(f"v_mov_b32 v{16+i}, s83")
        exec_set(1, 0)
        for i in range(2):
            a(f"buffer_store_dwordx4 v[{16+4*i}:{19+4*i}], v4, {srd(SRD_OUT)}, s82 offen offset:{16*i}")
    elif stamps:
        a(f"""
        s_waitcnt lgkmcnt(0) vmcnt(0)
        s_lshl_b32 s82, s2, 4
        s_add_u32 s82, s82, s3
        s_lshl_b32 s82, s82, 6
        s_add_u32 s82, s82, {WS_STAMP}
        v_mov_b32 v4, 0
        """)
        for i in range(16): a(f"v_mov_b32 v{16+i}, s{86+i}")
        exec_set(1, 0)
        for i in range(4):
            a(f"buffer_store_dwordx4 v[{16+4*i}:{19+4*i}], v4, {srd(SRD_WS)}, s82 offen offset:{16*i}")
    a.label("L_end")
    a("s_endpgm")
    R('.section .rodata,"a"')
    R(".p2align 6")
    R(f".amdhsa_kernel {NAME}_kernel")
    R("  .amdhsa_next_free_vgpr 128")
    R("  .amdhsa_next_free_sgpr 102")
    R("  .amdhsa_accum_offset 128")
    R("  .amdhsa_group_segment_fixed_size 0")
    R("  .amdhsa_kernarg_size 104")
    R("  .amdhsa_user_sgpr_count 2")
    R("  .amdhsa_user_sgpr_kernarg_segment_ptr 1")
    R("  .amdhsa_system_sgpr_workgroup_id_x 1")
    R(".end_amdhsa_kernel")
    return a.text()

if __name__ == "__main__":
    import json
    B = dict(b1_late=False, natt=3, qdelay=25, qsleep=20)
    B = dict(b1_late=False, natt=1, sweep=False, psleep=1)
    variants = {
        "v5a": dict(B, qat=400, hat=550),
        "v5b": dict(B, qat=350, hat=500, kgate=3),
        "v5c": dict(B, qat=300, hat=500, kgate=3),
        "v5d": dict(B, qat=450, hat=600),
        "v5e": dict(B, qat=300, hat=450, b1_late=True),
    }
    for n, o in variants.items():
        open(f"work/{n}.s", "w").write(gen(False, o))
        open(f"work/{n}s.s", "w").write(gen(True, o))
```

```python
import sys
from asmlib import Asm
NAME = "gated_mix__sliding_block_cached__swiglu_ffn__decode"

WS_QP = 0x20000
WS_GP = 0x40000
WS_UP = 0x60000
WS_YP = 0x80000
WS_OP = 0x100000
WS_STAMP = 0x10000000
L_Q = 0
L_ML = 1024
L_CNT = 1280
C_Q, C_ML, C_O, C_H, C_Y, C_K, C_V, C_REL = [L_CNT + 4 * i for i in range(8)]
L_H = 1408
L_G = 1664
L_Y = 2048
L_O = 6144
LDS_BYTES = L_O + 8 * 2048
SPIN_MAX = 60000
NWAVES = 16
SA, SB, SC, SW = 4, 8, 12, 16
TL, TG = 20, 24
S_F0, S_NU, S_X8, S_DD0 = 28, 29, 30, 31
S_SELLO, S_SELHI = 80, 81
def srd(b): return f"s[{b}:{b+3}]"

def gen(stamps=False, opts=None):
    opts = opts or {}
    FAST_N = opts.get("fast_n", 150)
    REL_N = opts.get("rel_n", 120)
    a = Asm()
    R = a.raw
    uid = [0]
    def U(p):
        uid[0] += 1
        return f"{p}_{uid[0]}"
    R(f"; @launch grid=(256,1,1) block=({64*NWAVES},1,1) lds={LDS_BYTES}")
    R('.amdgcn_target "amdgcn-amd-amdhsa--gfx950"')
    R(".text")
    R(f".globl {NAME}_kernel")
    R(".p2align 8")
    R(f".type {NAME}_kernel,@function")
    R(f"{NAME}_kernel:")
    def stamp(i):
        if stamps: a(f"s_memrealtime s[{86+2*i}:{87+2*i}]")
    def mk_srd(b, p, size):
        a(f"s_mov_b32 s{b}, s{p}")
        a(f"s_and_b32 s{b+1}, s{p+1}, 0xffff")
        a(f"s_mov_b32 s{b+2}, {size}")
        a(f"s_mov_b32 s{b+3}, 0x20000")
    def exec_set(lo, hi):
        a(f"s_mov_b32 exec_lo, {lo:#x}")
        a(f"s_mov_b32 exec_hi, {hi:#x}")
    def exec_rows(G):
        exec_set((0xFFFF << (16 * G)) & 0xFFFFFFFF if G < 2 else 0, (0xFFFF << (16 * (G - 2))) & 0xFFFFFFFF if G >= 2 else 0)
    def exec_all(): a("s_mov_b64 exec, -1")
    def tagcheck(regs, acc, t0, t1, T):
        first = True
        for q in regs:
            for h in range(2):
                a(f"v_xor_b32 v{t0}, s{T+2*h}, v{q+2*h}")
                a(f"v_xor_b32 v{t1}, s{T+2*h+1}, v{q+2*h+1}")
                if first:
                    a(f"v_or_b32 v{acc}, v{t0}, v{t1}"); first = False
                else:
                    a(f"v_or3_b32 v{acc}, v{acc}, v{t0}, v{t1}")
        a(f"v_and_b32 v{acc}, 0xff, v{acc}")
        a(f"v_cmp_ne_u32 vcc, 0, v{acc}")
    def tagcheck2(regs, acc, t0, t1, t2, t3):
        a(f"v_mov_b32 v{acc}, 0")
        for q in regs:
            for T, x in ((TL, t2), (TG, t3)):
                a(f"v_xor_b32 v{t0}, s{T}, v{q}")
                a(f"v_xor_b32 v{t1}, s{T+1}, v{q+1}")
                a(f"v_or_b32 v{x}, v{t0}, v{t1}")
                a(f"v_xor_b32 v{t0}, s{T+2}, v{q+2}")
                a(f"v_xor_b32 v{t1}, s{T+3}, v{q+3}")
                a(f"v_or3_b32 v{x}, v{x}, v{t0}, v{t1}")
                a(f"v_and_b32 v{x}, 0xff, v{x}")
            a(f"v_min_u32 v{t2}, v{t2}, v{t3}")
            a(f"v_or_b32 v{acc}, v{acc}, v{t2}")
        a(f"v_cmp_ne_u32 vcc, 0, v{acc}")
    def lds_op(op, off, val, vt):
        a(f"v_mov_b32 v{vt}, 0")
        a(f"v_mov_b32 v{vt+1}, {val}")
        a("s_mov_b64 s[46:47], exec")
        exec_set(1, 0)
        a(f"{op} v{vt}, v{vt+1} offset:{off}")
        a("s_mov_b64 exec, s[46:47]")
    def lds_add(off, vt): lds_op("ds_add_u32", off, 1, vt)
    def lds_add_rtn(off, vt):
        a(f"v_mov_b32 v{vt}, 0")
        a(f"v_mov_b32 v{vt+1}, 1")
        exec_set(1, 0)
        a(f"ds_add_rtn_u32 v{vt+1}, v{vt}, v{vt+1} offset:{off}")
        a("s_waitcnt lgkmcnt(0)")
        a(f"v_readfirstlane_b32 s79, v{vt+1}")
        exec_all()
    def lds_wait(off, val, vt, sleep=0):
        lp, ok = U("L_lw"), U("L_lok")
        a("s_mov_b32 s79, 0")
        a(f"v_mov_b32 v{vt+1}, 0")
        a.label(lp)
        a(f"ds_read_b32 v{vt}, v{vt+1} offset:{off}")
        a("s_waitcnt lgkmcnt(0)")
        a(f"v_cmp_gt_u32 vcc, {val}, v{vt}")
        a(f"s_cbranch_vccz {ok}")
        if sleep: a(f"s_sleep {sleep}")
        a(f"s_add_u32 s79, s79, 1")
        a(f"s_cmp_lt_u32 s79, {SPIN_MAX*16}")
        a(f"s_cbranch_scc1 {lp}")
        a.label(ok)
    cold = []
    def poll(loads, regs, tmps, T=TL, on_timeout=None, issued=False, between=None, slowflag=None):
        lp, ok, wt = U("L_poll"), U("L_pok"), U("L_pwt")
        a("s_mov_b32 s79, 0")
        if issued: a(f"s_branch {wt}")
        a.label(lp)
        for l in loads: a(l)
        if issued: a.label(wt)
        a("s_waitcnt vmcnt(0)")
        tagcheck(regs, tmps[0], tmps[1], tmps[2], T)
        a(f"s_cbranch_vccz {ok}")
        a("s_mov_b64 exec, vcc")
        a(f"s_add_u32 s79, s79, 1")
        a(f"s_cmp_lt_u32 s79, {FAST_N if on_timeout else SPIN_MAX}")
        a(f"s_cbranch_scc1 {lp}")
        if on_timeout:
            sl = U("L_slow")
            a(f"s_branch {sl}")
            def slow():
                a.label(sl)
                a("s_mov_b64 s[44:45], exec")
                exec_all()
                lds_op("ds_max_u32", C_REL, 2, tmps[0])
                on_timeout()
                if slowflag: a(f"s_mov_b32 s{slowflag}, 1")
                a("s_mov_b64 exec, s[44:45]")
                a("s_mov_b32 s79, 0")
                lp2 = U("L_sp")
                a.label(lp2)
                for l in loads: a(l)
                a("s_waitcnt vmcnt(0)")
                tagcheck2(regs, *tmps)
                a(f"s_cbranch_vccz {ok}")
                a("s_mov_b64 exec, vcc")
                a("s_sleep 4")
                a(f"s_add_u32 s79, s79, 1")
                a(f"s_cmp_lt_u32 s79, {SPIN_MAX}")
                a(f"s_cbranch_scc1 {lp2}")
                a(f"s_branch {ok}")
            cold.append(slow)
        a.label(ok)
        exec_all()
    def release_wait(restore, vt):
        lp, rs = U("L_rw"), U("L_rs")
        a("s_mov_b32 s79, 0")
        a(f"v_mov_b32 v{vt+1}, 0")
        a.label(lp)
        a("s_sleep 8")
        a(f"ds_read_b32 v{vt}, v{vt+1} offset:{C_REL}")
        a("s_waitcnt lgkmcnt(0)")
        a(f"v_readfirstlane_b32 s43, v{vt}")
        a("s_cmp_eq_u32 s43, 1")
        a("s_cbranch_scc1 L_fin")
        a("s_cmp_eq_u32 s43, 2")
        a(f"s_cbranch_scc1 {rs}")
        a(f"s_add_u32 s79, s79, 1")
        a(f"s_cmp_lt_u32 s79, {REL_N}")
        a(f"s_cbranch_scc1 {lp}")
        lds_op("ds_max_u32", C_REL, 2, vt)
        a.label(rs)
        restore()
        a("s_branch L_fin")
    def wait_until(ticks):
        lp = U("L_wu")
        a(f"s_add_u32 s32, s32, {ticks}")
        a.label(lp)
        a("s_sleep 2")
        a("s_memrealtime s[34:35]")
        a("s_waitcnt lgkmcnt(0)")
        a("s_sub_u32 s34, s34, s32")
        a("s_cmp_lt_i32 s34, 0")
        a(f"s_cbranch_scc1 {lp}")
    def perm_pair(Rb, Tb, m):
        for p in range(4):
            a(f"v_perm_b32 v{Tb+4*(2*p)+m}, v{Rb+4*(2*m+1)+p}, v{Rb+4*(2*m)+p}, s{S_SELLO}")
            a(f"v_perm_b32 v{Tb+4*(2*p+1)+m}, v{Rb+4*(2*m+1)+p}, v{Rb+4*(2*m)+p}, s{S_SELHI}")
    def transpose(Rb, Tb, ne=8):
        for m in range(ne // 2): perm_pair(Rb, Tb, m)
    def rowreduce(regs, op, rors=(8, 4, 2, 1)):
        for r in rors:
            for x in regs:
                a(f"{op}_dpp v{x}, v{x}, v{x} row_ror:{r} row_mask:0xf bank_mask:0xf")
    def xrow_reduce(regs, op, tmps):
        for sw in ("v_permlane16_swap_b32", "v_permlane32_swap_b32"):
            for x, t in zip(regs, tmps): a(f"v_mov_b32 v{t}, v{x}")
            for x, t in zip(regs, tmps): a(f"{sw} v{x}, v{t}")
            for x, t in zip(regs, tmps): a(f"{op} v{x}, v{x}, v{t}")
    def tags_ready():
        a(f"""
        s_waitcnt lgkmcnt(0)
        s_add_u32 s79, s78, 1
        s_mul_i32 s79, s79, 9
        s_mul_i32 s37, s79, 0x9E3779B1
        s_add_u32 s79, s79, s38
        s_mul_i32 s36, s79, 0x9E3779B1
        s_and_b32 s{TL}, s36, 0xff
        s_bfe_u32 s{TL+1}, s36, 0x80008
        s_bfe_u32 s{TL+2}, s36, 0x80010
        s_lshr_b32 s{TL+3}, s36, 24
        s_and_b32 s{TG}, s37, 0xff
        s_bfe_u32 s{TG+1}, s37, 0x80008
        s_bfe_u32 s{TG+2}, s37, 0x80010
        s_lshr_b32 s{TG+3}, s37, 24
        """)

    stamp(0)
    a("s_cmp_ge_u32 s2, 256")
    a("s_cbranch_scc1 L_end")
    if opts.get("perm") == 1:
        a("s_lshr_b32 s3, s2, 3"); a("s_lshl_b32 s2, s2, 5"); a("s_or_b32 s2, s2, s3"); a("s_and_b32 s2, s2, 255")
    if opts.get("perm") == 2:
        a("s_cmp_lt_u32 s2, 2"); a("s_cselect_b32 s3, 1, 0"); a("s_xor_b32 s2, s2, s3")
    a("""
    s_load_dwordx16 s[52:67], s[0:1], 0
    s_load_dwordx8 s[68:75], s[0:1], 64
    s_load_dwordx2 s[76:77], s[0:1], 96
    s_memrealtime s[32:33]
    s_getreg_b32 s38, hwreg(HW_REG_XCC_ID)
    v_lshrrev_b32 v1, 6, v0
    v_and_b32 v0, 63, v0
    v_readfirstlane_b32 s3, v1
    v_and_b32 v1, 15, v0
    v_lshrrev_b32 v2, 4, v0
    v_mov_b32 v3, 0xffffff00
    v_lshlrev_b32 v4, 4, v0
    s_and_b32 s38, s38, 7
    s_add_u32 s38, s38, 1
    s_and_b32 s30, s2, 7
    s_lshr_b32 s31, s2, 5
    s_and_b32 s83, s2, 1
    s_sub_u32 s29, 4, s83
    s_lshr_b32 s28, s30, 1
    s_mul_i32 s28, s28, 7
    s_lshl_b32 s83, s83, 2
    s_add_u32 s39, s28, s83
    s_lshl_b32 s28, s39, 3
    s_mul_i32 s83, s31, s29
    s_add_u32 s28, s28, s83
    s_lshl_b32 s28, s28, 3
    s_mov_b32 s80, 0x05040100
    s_mov_b32 s81, 0x07060302
    """)
    if stamps:
        for i in range(1, 8): a(f"s_mov_b64 s[{86+2*i}:{87+2*i}], 0")
    a("s_cmp_ge_u32 s3, 12")
    a("s_cbranch_scc1 L_cw")
    a("s_cmp_ge_u32 s3, 4")
    a("s_cbranch_scc1 L_attn")
    a("s_cmp_eq_u32 s3, 3")
    a("s_cbranch_scc1 L_h3")

    def ws_setup():
        a("s_load_dword s78, s[76:77], 0")
        mk_srd(SW, 76, 0x20000000)

    a("""
    v_and_b32 v5, 1, v1
    v_lshlrev_b32 v5, 10, v5
    v_bfe_u32 v6, v1, 1, 1
    v_lshl_add_u32 v5, v6, 6, v5
    v_lshl_add_u32 v5, v2, 4, v5
    v_lshrrev_b32 v6, 3, v1
    v_lshlrev_b32 v6, 2, v6
    v_add_u32 v6, v6, v2
    v_lshlrev_b32 v6, 3, v6
    v_and_b32 v7, 7, v1
    v_lshlrev_b32 v7, 4, v7
    s_mov_b32 s42, 0
    """)
    a("s_cmp_eq_u32 s3, 0")
    a("s_cbranch_scc0 L_h12")
    W0, T0, ACC, XA, PUB = 16, 80, 16, 112, 100
    def tile_loads(stride, nblk):
        for t in range(nblk):
            a(f"buffer_load_dwordx4 v[{XA+4*t}:{XA+4*t+3}], v5, {srd(SA)}, s83 offen offset:{128*t}")
        for t in range(nblk):
            for e in range(8):
                r = W0 + 4 * (8 * t + e)
                a(f"buffer_load_dwordx4 v[{r}:{r+3}], v8, {srd(SB)}, s82 offen nt")
                if not (t == nblk - 1 and e == 7):
                    a(f"s_add_u32 s82, s82, {stride if e < 7 else 57 * stride}")
    def tile_compute(nblk):
        for t in range(nblk):
            a(f"s_waitcnt vmcnt({8*(nblk-1-t)})")
            transpose(W0 + 32 * t, T0)
            for dd in range(8):
                c = f"v[{ACC+4*dd}:{ACC+4*dd+3}]" if t else "0"
                a(f"v_mfma_f32_16x16x32_bf16 v[{ACC+4*dd}:{ACC+4*dd+3}], v[{XA+4*t}:{XA+4*t+3}], v[{T0+4*dd}:{T0+4*dd+3}], {c}")
        tags_ready()
        for G in range(4):
            b, half = G >> 1, G & 1
            exec_rows(G)
            for m in range(4):
                d = ACC + 4 * (4 * half + m)
                a(f"v_add_f32_dpp v{PUB+m}, v{d+2+b}, v{d+b} row_ror:8 row_mask:0xf bank_mask:0xf")
        exec_all()
    def pub_store(T, mod):
        for m in range(4):
            a(f"v_and_or_b32 v{PUB+m}, v{PUB+m}, v3, s{T+m}")
        exec_set(0x00FF00FF, 0x00FF00FF)
        a(f"buffer_store_dwordx4 v[{PUB}:{PUB+3}], v{PUB+4}, {srd(SW)}, s41 offen {mod}")
        exec_all()
    def pub_restore():
        sk = U("L_nr")
        a("s_cmp_eq_u32 s40, 0")
        a(f"s_cbranch_scc1 {sk}")
        pub_store(TG, "sc1")
        a.label(sk)

    a("""
    v_lshlrev_b32 v8, 13, v6
    v_add_u32 v8, v8, v7
    s_bfe_u32 s84, s2, 0x20003
    s_lshl_b32 s85, s30, 3
    s_add_u32 s85, s85, s31
    s_lshl_b32 s82, s84, 20
    s_lshl_b32 s83, s85, 7
    s_add_u32 s82, s82, s83
    s_lshl_b32 s83, s84, 8
    s_waitcnt lgkmcnt(0)
    """)
    mk_srd(SA, 52, 2048)
    mk_srd(SB, 58, 4194304)
    tile_loads(8192, 2)
    a("s_barrier")
    ws_setup()
    a(f"""
    v_lshrrev_b32 v12, 1, v2
    v_lshlrev_b32 v12, 14, v12
    v_and_b32 v13, 1, v2
    v_lshl_add_u32 v12, v13, 4, v12
    v_lshl_add_u32 v{PUB+4}, v7, 1, v12
    s_lshl_b32 s41, s84, 15
    s_lshl_b32 s83, s85, 8
    s_add_u32 s41, s41, s83
    s_add_u32 s41, s41, {WS_QP}
    s_mov_b32 s40, 1
    """)
    tile_compute(2)
    a(f"v_lshl_add_u32 v{PUB+4}, v7, 1, v12")
    pub_store(TL, "")
    stamp(1)
    a("s_branch L_qgather")

    a.label("L_h12")
    a("""
    s_movk_i32 s82, 3584
    v_mul_lo_u32 v8, v6, s82
    v_add_u32 v8, v8, v7
    s_bfe_u32 s84, s2, 0x30003
    s_lshr_b32 s43, s2, 6
    s_add_u32 s85, s39, s43
    s_mul_i32 s82, s84, 229376
    s_lshl_b32 s83, s85, 7
    s_add_u32 s82, s82, s83
    s_lshl_b32 s83, s84, 7
    s_mov_b32 s40, 0
    s_waitcnt lgkmcnt(0)
    """)
    mk_srd(SA, 52, 2048)
    a(f"""
    s_cmp_eq_u32 s3, 1
    s_cselect_b32 s{SB}, s64, s66
    s_cselect_b32 s{SB+1}, s65, s67
    s_and_b32 s{SB+1}, s{SB+1}, 0xffff
    s_mov_b32 s{SB+2}, 1835008
    s_mov_b32 s{SB+3}, 0x20000
    """)
    a("s_cmp_eq_u32 s3, 1")
    a("s_cbranch_scc1 L_h12a")
    mk_srd(SC, 70, 1024)
    a(f"""
    buffer_load_dwordx4 v[116:119], v4, {srd(SA)}, 0 offen
    buffer_load_dwordx4 v[120:123], v4, {srd(SA)}, 0 offen offset:1024
    buffer_load_dwordx4 v[124:127], v4, {srd(SC)}, 0 offen
    """)
    a.label("L_h12a")
    a("s_cmp_ge_u32 s43, s29")
    a("s_cbranch_scc1 L_h12_skip")
    tile_loads(3584, 1)
    a.label("L_h12_skip")
    a("s_barrier")
    ws_setup()
    a("s_cmp_ge_u32 s43, s29")
    a("s_cbranch_scc1 L_h12_none")
    a(f"""
    v_lshrrev_b32 v12, 1, v2
    v_mul_u32_u24 v12, 7168, v12
    v_and_b32 v13, 1, v2
    v_lshl_add_u32 v12, v13, 4, v12
    s_mul_i32 s41, s84, 14336
    s_lshl_b32 s83, s85, 8
    s_add_u32 s41, s41, s83
    s_sub_u32 s83, s3, 1
    s_lshl_b32 s83, s83, 17
    s_add_u32 s41, s41, s83
    s_add_u32 s41, s41, {WS_GP}
    s_mov_b32 s40, 1
    """)
    tile_compute(1)
    a(f"v_lshl_add_u32 v{PUB+4}, v7, 1, v12")
    pub_store(TL, "")
    stamp(1)
    a("s_branch L_h12_done")
    a.label("L_h12_none")
    a(f"v_mov_b32 v{PUB+4}, 0")
    a(f"s_mov_b32 s41, {WS_STAMP}")
    tags_ready()
    a.label("L_h12_done")
    a("s_cmp_eq_u32 s3, 2")
    a("s_cbranch_scc1 L_ffn")

    a.label("L_qgather")
    a(f"""
    s_and_b32 s82, s2, 15
    s_lshl_b32 s82, s82, 11
    s_lshl_b32 s83, s3, 10
    s_add_u32 s82, s82, s83
    s_add_u32 s82, s82, {WS_QP}
    s_add_u32 s83, s82, 32768
    s_add_u32 s84, s82, 65536
    s_add_u32 s85, s82, 98304
    """)
    wait_until(opts.get("qat", 330))
    poll([f"buffer_load_dwordx4 v[{16+4*ks}:{19+4*ks}], v4, {srd(SW)}, s{82+ks} offen sc1" for ks in range(4)],
         [16, 20, 24, 28], (8, 9, 10, 11, 12), on_timeout=pub_restore, slowflag=42)
    for m in range(4):
        a(f"v_add_f32 v{16+m}, v{16+m}, v{20+m}")
        a(f"v_add_f32 v{24+m}, v{24+m}, v{28+m}")
    for m in range(4): a(f"v_add_f32 v{16+m}, v{16+m}, v{24+m}")
    a(f"""
    v_cvt_pk_bf16_f32 v8, v16, v17
    v_cvt_pk_bf16_f32 v9, v18, v19
    v_lshlrev_b32 v10, 3, v0
    s_lshl_b32 s82, s3, 9
    v_add_u32 v10, s82, v10
    ds_write_b64 v10, v[8:9] offset:{L_Q}
    s_waitcnt lgkmcnt(0)
    """)
    lds_add(C_Q, 8)
    stamp(2)
    a.label("L_hrel")
    a("s_cmp_eq_u32 s42, 1")
    a("s_cbranch_scc1 L_fin")
    release_wait(pub_restore, 8)

    a.label("L_ffn")
    lds_add(C_Q, 8)
    a(f"""
    v_and_b32 v8, 7, v0
    v_mul_u32_u24 v8, 14336, v8
    v_lshrrev_b32 v9, 3, v0
    v_lshl_add_u32 v8, v9, 4, v8
    s_lshl_b32 s82, s28, 2
    s_add_u32 s82, s82, {WS_GP}
    s_add_u32 s83, s82, 7168
    s_add_u32 s84, s82, {WS_UP-WS_GP}
    s_add_u32 s85, s84, 7168
    s_waitcnt vmcnt(0)
    v_mov_b32 v14, 0
    v_mov_b32 v15, 0
    """)
    for m in range(4):
        a(f"v_dot2_f32_bf16 v14, v{116+m}, v{124+m}, v14")
        a(f"v_dot2_f32_bf16 v15, v{120+m}, v{124+m}, v15")
    a("s_nop 3")
    rowreduce([14, 15], "v_add_f32")
    xrow_reduce([14, 15], "v_add_f32", [10, 11])
    a("""
    v_mul_f32 v14, 0xbfb8aa3b, v14
    v_mul_f32 v15, 0xbfb8aa3b, v15
    v_exp_f32 v14, v14
    v_exp_f32 v15, v15
    v_add_f32 v14, 1.0, v14
    v_add_f32 v15, 1.0, v15
    v_rcp_f32 v14, v14
    v_rcp_f32 v15, v15
    """)
    for m in range(16): a(f"v_mov_b32 v{16+m}, 0")
    wait_until(opts.get("hat", 400))
    a("s_cmp_eq_u32 s29, 4")
    a("s_cselect_b32 exec_hi, -1, 0xffff")
    poll([f"buffer_load_dwordx4 v[{16+4*x}:{19+4*x}], v8, {srd(SW)}, s{82+x} offen sc1" for x in range(4)],
         [16, 20, 24, 28], (9, 10, 11, 12, 13), on_timeout=pub_restore, slowflag=42)
    for ctl in ("quad_perm:[1,0,3,2]", "quad_perm:[2,3,0,1]", "row_half_mirror"):
        for m in range(16):
            a(f"v_add_f32_dpp v{16+m}, v{16+m}, v{16+m} {ctl} row_mask:0xf bank_mask:0xf")
    for m in range(8): a(f"v_mul_f32 v{32+m}, 0xbfb8aa3b, v{16+m}")
    for m in range(8): a(f"v_exp_f32 v{32+m}, v{32+m}")
    for m in range(8): a(f"v_add_f32 v{32+m}, 1.0, v{32+m}")
    for m in range(8): a(f"v_rcp_f32 v{32+m}, v{32+m}")
    for m in range(8): a(f"v_mul_f32 v{16+m}, v{16+m}, v{24+m}")
    for m in range(8): a(f"v_mul_f32 v{16+m}, v{16+m}, v{32+m}")
    a("v_sub_f32 v10, 1.0, v14")
    a("v_sub_f32 v11, 1.0, v15")
    for m in range(4): a(f"v_mul_f32 v{16+m}, v{16+m}, v10")
    for m in range(4): a(f"v_mul_f32 v{20+m}, v{20+m}, v11")
    a(f"""
    v_lshrrev_b32 v9, 3, v0
    v_lshlrev_b32 v9, 4, v9
    v_mov_b32 v12, 0
    """)
    exec_set(0x01010101, 0x01010101)
    a(f"ds_write_b128 v9, v[16:19] offset:{L_H}")
    a(f"ds_write_b128 v9, v[20:23] offset:{L_H+128}")
    exec_set(1, 0)
    a(f"ds_write_b64 v12, v[14:15] offset:{L_G}")
    exec_all()
    a("s_waitcnt lgkmcnt(0)")
    lds_add(C_H, 8)
    stamp(2)
    a("s_branch L_hrel")

    a.label("L_h3")
    a(f"""
    v_mov_b32 v8, -1
    v_lshlrev_b32 v9, 2, v0
    ds_write_b32 v9, v8 offset:{L_ML}
    v_mov_b32 v8, 0
    ds_write_b32 v9, v8 offset:{L_CNT}
    s_waitcnt lgkmcnt(0)
    s_barrier
    """)
    ws_setup()
    tags_ready()
    lds_add(C_Q, 8)
    a("s_cmp_ge_u32 s2, 32")
    a("s_cbranch_scc1 L_fin")
    mk_srd(SC, 72, 2048)
    a(f"""
    v_lshrrev_b32 v8, 3, v0
    v_lshlrev_b32 v8, 10, v8
    v_and_b32 v9, 7, v0
    v_lshl_add_u32 v48, v9, 4, v8
    s_lshr_b32 s82, s2, 3
    s_lshl_b32 s82, s82, 16
    s_lshl_b32 s83, s30, 7
    s_add_u32 s82, s82, s83
    s_add_u32 s82, s82, {WS_YP}
    v_lshlrev_b32 v8, 3, v0
    s_bfe_u32 s84, s2, 0x10002
    s_lshl_b32 s84, s84, 10
    s_lshr_b32 s83, s2, 3
    s_lshl_b32 s83, s83, 8
    s_add_u32 s84, s84, s83
    s_and_b32 s83, s2, 3
    s_lshl_b32 s83, s83, 6
    s_add_u32 s84, s84, s83
    s_add_u32 s85, s78, 1
    v_mov_b32 v5, s85
    v_mov_b32 v6, 0
    """)
    for i in range(1, 8): a(f"v_add_u32 v{48+i}, {8192*i}, v48")
    lds_wait(C_Y if opts.get("ywait", True) else C_O, 4 if opts.get("ywait", True) else 8, 10, sleep=2)
    stamp(1)
    poll([f"buffer_load_dwordx4 v[{16+4*i}:{19+4*i}], v{48+i}, {srd(SW)}, s82 offen sc1" for i in range(8)],
         [16 + 4 * i for i in range(8)], (9, 10, 11), T=TG)
    stamp(2)
    for st in (4, 2, 1):
        for i in range(st):
            for m in range(4): a(f"v_add_f32 v{16+4*i+m}, v{16+4*i+m}, v{16+4*(i+st)+m}")
    rowreduce([16, 17, 18, 19], "v_add_f32", (8,))
    xrow_reduce([16, 17, 18, 19], "v_add_f32", [20, 21, 22, 23])
    a("v_cvt_pk_bf16_f32 v16, v16, v17")
    a("v_cvt_pk_bf16_f32 v17, v18, v19")
    exec_set(0xFF, 0)
    a(f"buffer_store_dwordx2 v[16:17], v8, {srd(SC)}, s84 offen")
    a("s_cmp_lg_u32 s2, 0")
    a("s_cbranch_scc1 L_noepoch")
    exec_set(1, 0)
    a(f"buffer_store_dword v5, v6, {srd(SW)}, 0 offen sc1")
    a.label("L_noepoch")
    exec_all()
    stamp(7)
    a("s_branch L_fin")

    a.label("L_cw")
    WC, TC, D, PL, AO = 16, 40, 72, 104, 112
    a(f"""
    s_sub_u32 s84, s3, 12
    v_lshlrev_b32 v8, 15, v2
    v_lshl_add_u32 v8, v1, 4, v8
    v_lshlrev_b32 v9, 10, v2
    v_lshl_add_u32 v9, v1, 4, v9
    s_lshl_b32 s82, s30, 2
    s_add_u32 s82, s82, s84
    s_lshl_b32 s82, s82, 17
    s_lshl_b32 s83, s31, 10
    s_add_u32 s82, s82, s83
    s_bfe_u32 s85, s2, 0x20003
    s_lshl_b32 s85, s85, 8
    s_add_u32 s82, s82, s85
    s_lshl_b32 s79, s84, 3
    s_add_u32 s83, s28, s79
    s_lshl_b32 s83, s83, 10
    s_add_u32 s83, s83, s85
    s_waitcnt lgkmcnt(0)
    """)
    mk_srd(SA, 60, 4194304)
    mk_srd(SB, 68, 1835008)
    a("s_barrier")
    ws_setup()
    tags_ready()
    lds_add(C_Q, 10)
    lds_wait(C_V, 8, 10, sleep=4)
    for e in range(4):
        a(f"buffer_load_dwordx4 v[{WC+4*e}:{WC+4*e+3}], v8, {srd(SA)}, s82 offen nt")
        if e < 3: a("s_add_u32 s82, s82, 8192")
    a(f"buffer_load_dwordx4 v[{WC+16}:{WC+19}], v9, {srd(SB)}, s83 offen nt")
    a("s_add_u32 s83, s83, 4096")
    a(f"buffer_load_dwordx4 v[{WC+20}:{WC+23}], v9, {srd(SB)}, s83 offen nt")
    stamp(1)
    a(f"""
    v_and_b32 v8, 1, v1
    v_lshlrev_b32 v8, 7, v8
    v_lshrrev_b32 v9, 1, v1
    v_add_u32 v8, v8, v9
    v_lshlrev_b32 v8, 11, v8
    v_lshl_add_u32 v9, v2, 4, v8
    s_lshl_b32 s82, s30, 15
    s_lshl_b32 s83, s31, 8
    s_add_u32 s82, s82, s83
    s_lshl_b32 s79, s84, 6
    s_add_u32 s82, s82, s79
    s_add_u32 s82, s82, {WS_OP}
    s_add_u32 s83, s82, 16384
    v_lshrrev_b32 v12, 1, v2
    v_lshlrev_b32 v12, 9, v12
    v_and_b32 v13, 1, v2
    v_lshl_add_u32 v12, v13, 4, v12
    v_lshl_add_u32 v12, v1, 5, v12
    s_lshl_b32 s79, s84, 10
    v_add_u32 v13, s79, v12
    s_bfe_u32 s40, s2, 0x20003
    s_lshl_b32 s40, s40, 6
    s_lshl_b32 s79, s30, 3
    s_add_u32 s40, s40, s79
    s_add_u32 s40, s40, s31
    s_lshl_b32 s40, s40, 10
    s_add_u32 s40, s40, {WS_YP}
    s_mov_b32 s42, 0
    """)
    for dd in range(8): a(f"v_mov_b32 v{TC+4*dd+3}, 0")
    lds_wait(C_H, 1, 10, sleep=4)
    a(f"""
    v_and_b32 v8, 1, v1
    v_lshlrev_b32 v14, 2, v8
    v_lshlrev_b32 v8, 7, v8
    v_lshl_add_u32 v8, v2, 2, v8
    s_lshl_b32 s79, s84, 5
    v_add_u32 v8, s79, v8
    ds_read_b32 v10, v8 offset:{L_H}
    ds_read_b32 v11, v8 offset:{L_H+16}
    ds_read_b32 v118, v14 offset:{L_G}
    v_lshlrev_b32 v8, 3, v2
    s_waitcnt lgkmcnt(0)
    v_cvt_pk_bf16_f32 v{AO+2}, v10, v11
    v_mov_b32 v{AO+3}, 0
    """)
    oloads = [f"buffer_load_dwordx4 v[{PL}:{PL+3}], v9, {srd(SW)}, s82 offen sc1",
              f"buffer_load_dwordx4 v[{PL+4}:{PL+7}], v9, {srd(SW)}, s83 offen sc1"]
    a("s_waitcnt vmcnt(0)")
    stamp(2)
    for l in oloads: a(l)
    transpose(WC, TC, 6)
    poll(oloads, [PL, PL + 4], (5, 6, 7, 10, 11), on_timeout=lambda: None, issued=True, slowflag=42)
    stamp(3)
    for h, x in ((0, 116), (4, 117)):
        a(f"v_bfe_u32 v{x}, v{PL+h}, 8, 2")
        a(f"v_bfe_u32 v5, v{PL+h+1}, 8, 2")
        a(f"v_bfe_u32 v6, v{PL+h+2}, 8, 2")
        a(f"v_bfe_u32 v7, v{PL+h+3}, 8, 2")
        a(f"v_lshl_or_b32 v{x}, v5, 2, v{x}")
        a(f"v_lshl_or_b32 v6, v7, 2, v6")
        a(f"v_lshl_or_b32 v{x}, v6, 4, v{x}")
        a(f"v_lshlrev_b32 v{x}, v8, v{x}")
    xrow_reduce([116, 117], "v_or_b32", [5, 6])
    a("v_max_f32 v5, v116, v117")
    rowreduce([5], "v_max_f32", (8, 4, 2))
    a(f"""
    v_sub_f32 v116, v116, v5
    v_sub_f32 v117, v117, v5
    v_exp_f32 v116, v116
    v_exp_f32 v117, v117
    v_add_f32 v6, v116, v117
    """)
    for m in range(4): a(f"v_mul_f32 v{PL+m}, v116, v{PL+m}")
    for m in range(4): a(f"v_fmac_f32 v{PL+m}, v117, v{PL+4+m}")
    rowreduce([6, PL, PL + 1, PL + 2, PL + 3], "v_add_f32", (8, 4, 2))
    a("v_rcp_f32 v6, v6")
    a("v_mul_f32 v6, v6, v118")
    for m in range(4): a(f"v_mul_f32 v{PL+m}, v6, v{PL+m}")
    a(f"v_cvt_pk_bf16_f32 v{AO}, v{PL}, v{PL+1}")
    a(f"v_cvt_pk_bf16_f32 v{AO+1}, v{PL+2}, v{PL+3}")
    stamp(4)
    for dd in range(8):
        a(f"v_mfma_f32_16x16x32_bf16 v[{D+4*dd}:{D+4*dd+3}], v[{AO}:{AO+3}], v[{TC+4*dd}:{TC+4*dd+3}], 0")
    for G in (0, 2, 1, 3):
        b, half = G >> 1, G & 1
        exec_rows(G)
        for m in range(4):
            a(f"v_mov_b32 v{16+m}, v{D+4*(4*half+m)+b}")
    exec_all()
    a(f"ds_write_b128 v13, v[16:19] offset:{L_Y}")
    a("s_waitcnt lgkmcnt(0)")
    lds_add_rtn(C_Y, 5)
    stamp(5)
    a("s_cmp_lg_u32 s79, 3")
    a("s_cbranch_scc1 L_crel")
    for x in range(4):
        a(f"ds_read_b128 v[{20+4*x}:{23+4*x}], v12 offset:{L_Y+1024*x}")
    a("s_waitcnt lgkmcnt(0)")
    for m in range(4):
        a(f"v_add_f32 v{20+m}, v{20+m}, v{24+m}")
        a(f"v_add_f32 v{28+m}, v{28+m}, v{32+m}")
    for m in range(4): a(f"v_add_f32 v{20+m}, v{20+m}, v{28+m}")
    for m in range(4): a(f"v_and_or_b32 v{20+m}, v{20+m}, v3, s{TG+m}")
    a(f"buffer_store_dwordx4 v[20:23], v12, {srd(SW)}, s40 offen sc1")
    stamp(6)
    a.label("L_crel")
    a("s_cmp_eq_u32 s42, 1")
    a("s_cbranch_scc1 L_fin")
    lds_op("ds_max_u32", C_REL, 1, 5)
    a("s_branch L_fin")

    a.label("L_attn")
    KR, VR, QB, SR, PR, FAC = 16, 48, 80, 96, 104, 108
    a("""
    s_sub_u32 s84, s3, 4
    s_and_b32 s82, s2, 15
    s_lshr_b32 s83, s2, 4
    s_lshl_b32 s85, s82, 4
    s_add_u32 s85, s85, s83
    s_lshl_b32 s82, s82, 23
    s_add_u32 s82, s82, 0x700000
    s_lshl_b32 s83, s83, 16
    s_add_u32 s82, s82, s83
    s_lshl_b32 s83, s84, 13
    s_add_u32 s82, s82, s83
    s_add_u32 s83, s82, 4096
    v_lshlrev_b32 v5, 8, v1
    v_lshl_add_u32 v5, v2, 4, v5
    v_lshlrev_b32 v6, 10, v2
    v_lshl_add_u32 v6, v1, 4, v6
    s_waitcnt lgkmcnt(0)
    """)
    mk_srd(SA, 54, 134217728)
    mk_srd(SB, 56, 134217728)
    a("s_barrier")
    for T in range(2):
        for jj in range(4):
            r = KR + 4 * (4 * T + jj)
            a(f"buffer_load_dwordx4 v[{r}:{r+3}], v5, {srd(SA)}, s{82+T} offen offset:{64*jj} nt")
    lds_add(C_K, 8)
    ws_setup()
    lds_wait(C_K, 8, 8, sleep=1)
    for e in range(8):
        r = VR + 4 * e
        a(f"buffer_load_dwordx4 v[{r}:{r+3}], v6, {srd(SB)}, s{82+(e>>2)} offen offset:{256*(e&3)} nt")
    lds_add(C_V, 8)
    stamp(1)
    tags_ready()
    a(f"""
    v_and_b32 v6, 3, v1
    v_lshlrev_b32 v6, 8, v6
    v_lshl_add_u32 v6, v2, 4, v6
    s_mov_b32 s42, 0
    v_lshlrev_b32 v13, 6, v1
    v_lshl_add_u32 v13, v2, 4, v13
    s_lshl_b32 s79, s84, 11
    v_add_u32 v13, s79, v13
    v_lshlrev_b32 v5, 2, v0
    s_lshl_b32 s79, s84, 8
    v_add_u32 v5, s79, v5
    v_mov_b32 v7, 0xfffffc00
    s_lshl_b32 s41, s85, 11
    s_add_u32 s41, s41, {WS_OP}
    v_and_b32 v14, 3, v0
    v_lshlrev_b32 v14, 3, v14
    v_lshrrev_b32 v15, v14, s37
    v_lshrrev_b32 v14, v14, s36
    v_and_b32 v14, 0xff, v14
    v_and_b32 v15, 0xff, v15
    """)
    lds_wait(C_Q, 8, 8, sleep=2)
    stamp(2)
    for jj in range(4):
        a(f"ds_read_b128 v[{QB+4*jj}:{QB+4*jj+3}], v6 offset:{L_Q+64*jj}")
    a("s_waitcnt vmcnt(8) lgkmcnt(0)")
    stamp(3)
    for jj in range(4):
        for T in range(2):
            c = f"v[{SR+4*T}:{SR+4*T+3}]" if jj else "0"
            r = KR + 4 * (4 * T + jj)
            a(f"v_mfma_f32_16x16x32_bf16 v[{SR+4*T}:{SR+4*T+3}], v[{r}:{r+3}], v[{QB+4*jj}:{QB+4*jj+3}], {c}")
    a("s_mov_b32 s79, 0x3e0293ee")
    for x in range(8): a(f"v_mul_f32 v{SR+x}, s79, v{SR+x}")
    a(f"v_max3_f32 v8, v{SR}, v{SR+1}, v{SR+2}")
    a(f"v_max3_f32 v8, v8, v{SR+3}, v{SR+4}")
    a(f"v_max3_f32 v8, v8, v{SR+5}, v{SR+6}")
    a(f"v_max_f32 v8, v8, v{SR+7}")
    xrow_reduce([8], "v_max_f32", [10])
    for x in range(8): a(f"v_sub_f32 v{SR+x}, v{SR+x}, v8")
    for x in range(8): a(f"v_exp_f32 v{SR+x}, v{SR+x}")
    a(f"v_add_f32 v9, v{SR}, v{SR+1}")
    for x in range(2, 8): a(f"v_add_f32 v9, v9, v{SR+x}")
    for x in range(4): a(f"v_cvt_pk_bf16_f32 v{PR+x}, v{SR+2*x}, v{SR+2*x+1}")
    xrow_reduce([9], "v_add_f32", [10])
    a(f"""
    v_lshlrev_b32 v10, 3, v0
    s_lshl_b32 s79, s84, 5
    v_add_u32 v10, s79, v10
    """)
    exec_set(0xF, 0)
    a(f"ds_write_b64 v10, v[8:9] offset:{L_ML}")
    exec_all()
    a("s_waitcnt lgkmcnt(0)")
    lds_add_rtn(C_ML, 10)
    def factors():
        a("v_lshlrev_b32 v8, 3, v2")
        for x in range(8):
            a(f"ds_read_b64 v[{QB+2*x}:{QB+2*x+1}], v8 offset:{L_ML+32*x}")
        a("s_waitcnt lgkmcnt(0)")
        a(f"v_max3_f32 v9, v{QB}, v{QB+2}, v{QB+4}")
        a(f"v_max3_f32 v9, v9, v{QB+6}, v{QB+8}")
        a(f"v_max3_f32 v9, v9, v{QB+10}, v{QB+12}")
        a(f"v_max_f32 v9, v9, v{QB+14}")
        for x in range(8): a(f"v_sub_f32 v{FAC+x}, v{QB+2*x}, v9")
        for x in range(8): a(f"v_exp_f32 v{FAC+x}, v{FAC+x}")
        a(f"v_mul_f32 v117, v{FAC}, v{QB+1}")
        for x in range(1, 8): a(f"v_fmac_f32 v117, v{FAC+x}, v{QB+2*x+1}")
        a("""
        v_log_f32 v116, v117
        v_rcp_f32 v117, v117
        v_add_f32 v116, v116, v9
        v_lshlrev_b32 v8, 1, v1
        v_lshrrev_b32 v116, v8, v116
        v_and_b32 v116, 3, v116
        v_lshl_or_b32 v116, v116, 8, v14
        s_mov_b32 s42, 1
        """)
        for x in range(8): a(f"v_mul_f32 v{FAC+x}, v{FAC+x}, v117")
    a("s_cmp_lg_u32 s79, 7")
    a("s_cbranch_scc1 L_nofac")
    factors()
    a.label("L_nofac")
    for m in range(4):
        a(f"s_waitcnt vmcnt({6-2*m})")
        if m == 3: stamp(4)
        perm_pair(VR, KR, m)
    for dd in range(8):
        a(f"v_mfma_f32_16x16x32_bf16 v[{VR+4*dd}:{VR+4*dd+3}], v[{KR+4*dd}:{KR+4*dd+3}], v[{PR}:{PR+3}], 0")
    exec_set(0x000F000F, 0x000F000F)
    for dd in range(8):
        a(f"ds_write_b128 v13, v[{VR+4*dd}:{VR+4*dd+3}] offset:{L_O+256*dd}")
    exec_all()
    a("s_waitcnt lgkmcnt(0)")
    lds_add(C_O, 10)
    stamp(5)
    a("s_cmp_eq_u32 s42, 1")
    a("s_cbranch_scc1 L_facdone")
    lds_wait(C_ML, 8, 10)
    factors()
    a.label("L_facdone")
    lds_wait(C_O, 8, 10)
    stamp(6)
    for x in range(8):
        a(f"ds_read_b32 v{QB+x}, v5 offset:{L_O+2048*x}")
    for x in range(8):
        a(f"s_waitcnt lgkmcnt({7-x})")
        if x == 0: a(f"v_mul_f32 v12, v{FAC}, v{QB}")
        else: a(f"v_fmac_f32 v12, v{FAC+x}, v{QB+x}")
    a("v_and_or_b32 v12, v12, v7, v116")
    a(f"buffer_store_dword v12, v5, {srd(SW)}, s41 offen")
    stamp(7)
    def o_restore():
        a("v_and_or_b32 v12, v12, v3, v15")
        a(f"buffer_store_dword v12, v5, {srd(SW)}, s41 offen sc1")
    release_wait(o_restore, 10)

    for c in cold: c()

    a.label("L_fin")
    if stamps:
        a(f"""
        s_waitcnt lgkmcnt(0) vmcnt(0)
        s_lshl_b32 s82, s2, 4
        s_add_u32 s82, s82, s3
        s_lshl_b32 s82, s82, 6
        s_add_u32 s82, s82, {WS_STAMP}
        v_mov_b32 v4, 0
        """)
        for i in range(16): a(f"v_mov_b32 v{16+i}, s{86+i}")
        exec_set(1, 0)
        for i in range(4):
            a(f"buffer_store_dwordx4 v[{16+4*i}:{19+4*i}], v4, {srd(SW)}, s82 offen offset:{16*i}")
    a.label("L_end")
    a("s_endpgm")
    R('.section .rodata,"a"')
    R(".p2align 6")
    R(f".amdhsa_kernel {NAME}_kernel")
    R("  .amdhsa_next_free_vgpr 128")
    R("  .amdhsa_next_free_sgpr 102")
    R("  .amdhsa_accum_offset 128")
    R("  .amdhsa_group_segment_fixed_size 0")
    R("  .amdhsa_kernarg_size 104")
    R("  .amdhsa_user_sgpr_count 2")
    R("  .amdhsa_user_sgpr_kernarg_segment_ptr 1")
    R("  .amdhsa_system_sgpr_workgroup_id_x 1")
    R(".end_amdhsa_kernel")
    return a.text()

if __name__ == "__main__":
    variants = {
        "x0": dict(),
        "x1": dict(ywait=False),
        "x2": dict(qat=300, hat=380),
        "xp1": dict(perm=1),
        "xp2": dict(perm=2),
    }
    for n, o in variants.items():
        open(f"work/{n}.s", "w").write(gen(False, o))
        open(f"work/{n}s.s", "w").write(gen(True, o))
```

```python
import sys
from asmlib import Asm
NAME = "gated_mix__sliding_block_cached__swiglu_ffn__decode"

WS_FL = 0x10000
WS_QP = 0x20000
WS_GP = 0x40000
WS_UP = 0x60000
WS_YP = 0x80000
WS_OP = 0x100000
WS_STAMP = 0x10000000
L_Q = 0
L_ML = 1024
L_CNT = 1280
C_Q, C_ML, C_O, C_H, C_Y, C_K, C_V, C_REL, C_G = [L_CNT + 4 * i for i in range(9)]
L_H = 1408
L_G = 1664
L_Y = 2048
L_O = 6144
LDS_BYTES = L_O + 8 * 2048
SPIN_MAX = 60000
NWAVES = 16
SA, SB, SC, SW = 4, 8, 12, 16
TL, TG = 20, 24
S_F0, S_NU, S_X8, S_DD0 = 28, 29, 30, 31
S_SELLO, S_SELHI = 80, 81
def srd(b): return f"s[{b}:{b+3}]"

def gen(stamps=False, opts=None):
    opts = opts or {}
    FAST_N = opts.get("fast_n", 150)
    REL_N = opts.get("rel_n", 120)
    a = Asm()
    R = a.raw
    uid = [0]
    def U(p):
        uid[0] += 1
        return f"{p}_{uid[0]}"
    R(f"; @launch grid=(256,1,1) block=({64*NWAVES},1,1) lds={LDS_BYTES}")
    R('.amdgcn_target "amdgcn-amd-amdhsa--gfx950"')
    R(".text")
    R(f".globl {NAME}_kernel")
    R(".p2align 8")
    R(f".type {NAME}_kernel,@function")
    R(f"{NAME}_kernel:")
    def stamp(i):
        if stamps: a(f"s_memrealtime s[{86+2*i}:{87+2*i}]")
    def mk_srd(b, p, size):
        a(f"s_mov_b32 s{b}, s{p}")
        a(f"s_and_b32 s{b+1}, s{p+1}, 0xffff")
        a(f"s_mov_b32 s{b+2}, {size}")
        a(f"s_mov_b32 s{b+3}, 0x20000")
    def exec_set(lo, hi):
        a(f"s_mov_b32 exec_lo, {lo:#x}")
        a(f"s_mov_b32 exec_hi, {hi:#x}")
    def exec_rows(G):
        exec_set((0xFFFF << (16 * G)) & 0xFFFFFFFF if G < 2 else 0, (0xFFFF << (16 * (G - 2))) & 0xFFFFFFFF if G >= 2 else 0)
    def exec_all(): a("s_mov_b64 exec, -1")
    def tagcheck(regs, acc, t0, t1, T):
        first = True
        for q in regs:
            for h in range(2):
                a(f"v_xor_b32 v{t0}, s{T+2*h}, v{q+2*h}")
                a(f"v_xor_b32 v{t1}, s{T+2*h+1}, v{q+2*h+1}")
                if first:
                    a(f"v_or_b32 v{acc}, v{t0}, v{t1}"); first = False
                else:
                    a(f"v_or3_b32 v{acc}, v{acc}, v{t0}, v{t1}")
        a(f"v_and_b32 v{acc}, 0xff, v{acc}")
        a(f"v_cmp_ne_u32 vcc, 0, v{acc}")
    def tagcheck2(regs, acc, t0, t1, t2, t3):
        a(f"v_mov_b32 v{acc}, 0")
        for q in regs:
            for T, x in ((TL, t2), (TG, t3)):
                a(f"v_xor_b32 v{t0}, s{T}, v{q}")
                a(f"v_xor_b32 v{t1}, s{T+1}, v{q+1}")
                a(f"v_or_b32 v{x}, v{t0}, v{t1}")
                a(f"v_xor_b32 v{t0}, s{T+2}, v{q+2}")
                a(f"v_xor_b32 v{t1}, s{T+3}, v{q+3}")
                a(f"v_or3_b32 v{x}, v{x}, v{t0}, v{t1}")
                a(f"v_and_b32 v{x}, 0xff, v{x}")
            a(f"v_min_u32 v{t2}, v{t2}, v{t3}")
            a(f"v_or_b32 v{acc}, v{acc}, v{t2}")
        a(f"v_cmp_ne_u32 vcc, 0, v{acc}")
    def lds_op(op, off, val, vt):
        a(f"v_mov_b32 v{vt}, 0")
        a(f"v_mov_b32 v{vt+1}, {val}")
        a("s_mov_b64 s[46:47], exec")
        exec_set(1, 0)
        a(f"{op} v{vt}, v{vt+1} offset:{off}")
        a("s_mov_b64 exec, s[46:47]")
    def lds_add(off, vt): lds_op("ds_add_u32", off, 1, vt)
    def lds_add_rtn(off, vt):
        a(f"v_mov_b32 v{vt}, 0")
        a(f"v_mov_b32 v{vt+1}, 1")
        exec_set(1, 0)
        a(f"ds_add_rtn_u32 v{vt+1}, v{vt}, v{vt+1} offset:{off}")
        a("s_waitcnt lgkmcnt(0)")
        a(f"v_readfirstlane_b32 s79, v{vt+1}")
        exec_all()
    def lds_wait(off, val, vt, sleep=0):
        lp, ok = U("L_lw"), U("L_lok")
        a("s_mov_b32 s79, 0")
        a(f"v_mov_b32 v{vt+1}, 0")
        a.label(lp)
        a(f"ds_read_b32 v{vt}, v{vt+1} offset:{off}")
        a("s_waitcnt lgkmcnt(0)")
        a(f"v_cmp_gt_u32 vcc, {val}, v{vt}")
        a(f"s_cbranch_vccz {ok}")
        if sleep: a(f"s_sleep {sleep}")
        a(f"s_add_u32 s79, s79, 1")
        a(f"s_cmp_lt_u32 s79, {SPIN_MAX*16}")
        a(f"s_cbranch_scc1 {lp}")
        a.label(ok)
    cold = []
    def poll(loads, regs, tmps, T=TL, on_timeout=None, issued=False, between=None, slowflag=None):
        lp, ok, wt = U("L_poll"), U("L_pok"), U("L_pwt")
        a("s_mov_b32 s79, 0")
        if issued: a(f"s_branch {wt}")
        a.label(lp)
        for l in loads: a(l)
        if issued: a.label(wt)
        a("s_waitcnt vmcnt(0)")
        tagcheck(regs, tmps[0], tmps[1], tmps[2], T)
        a(f"s_cbranch_vccz {ok}")
        a("s_mov_b64 exec, vcc")
        a(f"s_add_u32 s79, s79, 1")
        a(f"s_cmp_lt_u32 s79, {FAST_N if on_timeout else SPIN_MAX}")
        a(f"s_cbranch_scc1 {lp}")
        if on_timeout:
            sl = U("L_slow")
            a(f"s_branch {sl}")
            def slow():
                a.label(sl)
                a("s_mov_b64 s[44:45], exec")
                exec_all()
                lds_op("ds_max_u32", C_REL, 2, tmps[0])
                on_timeout()
                if slowflag: a(f"s_mov_b32 s{slowflag}, 1")
                a("s_mov_b64 exec, s[44:45]")
                a("s_mov_b32 s79, 0")
                lp2 = U("L_sp")
                a.label(lp2)
                for l in loads: a(l)
                a("s_waitcnt vmcnt(0)")
                tagcheck2(regs, *tmps)
                a(f"s_cbranch_vccz {ok}")
                a("s_mov_b64 exec, vcc")
                a("s_sleep 4")
                a(f"s_add_u32 s79, s79, 1")
                a(f"s_cmp_lt_u32 s79, {SPIN_MAX}")
                a(f"s_cbranch_scc1 {lp2}")
                a(f"s_branch {ok}")
            cold.append(slow)
        a.label(ok)
        exec_all()
    def release_wait(restore, vt):
        lp, rs = U("L_rw"), U("L_rs")
        a("s_mov_b32 s79, 0")
        a(f"v_mov_b32 v{vt+1}, 0")
        a.label(lp)
        a("s_sleep 8")
        a(f"ds_read_b32 v{vt}, v{vt+1} offset:{C_REL}")
        a("s_waitcnt lgkmcnt(0)")
        a(f"v_readfirstlane_b32 s43, v{vt}")
        a("s_cmp_eq_u32 s43, 1")
        a("s_cbranch_scc1 L_fin")
        a("s_cmp_eq_u32 s43, 2")
        a(f"s_cbranch_scc1 {rs}")
        a(f"s_add_u32 s79, s79, 1")
        a(f"s_cmp_lt_u32 s79, {REL_N}")
        a(f"s_cbranch_scc1 {lp}")
        lds_op("ds_max_u32", C_REL, 2, vt)
        a.label(rs)
        restore()
        a("s_branch L_fin")
    def wait_until(ticks):
        lp = U("L_wu")
        a(f"s_add_u32 s32, s32, {ticks}")
        a.label(lp)
        a("s_sleep 2")
        a("s_memrealtime s[34:35]")
        a("s_waitcnt lgkmcnt(0)")
        a("s_sub_u32 s34, s34, s32")
        a("s_cmp_lt_i32 s34, 0")
        a(f"s_cbranch_scc1 {lp}")
    def perm_pair(Rb, Tb, m):
        for p in range(4):
            a(f"v_perm_b32 v{Tb+4*(2*p)+m}, v{Rb+4*(2*m+1)+p}, v{Rb+4*(2*m)+p}, s{S_SELLO}")
            a(f"v_perm_b32 v{Tb+4*(2*p+1)+m}, v{Rb+4*(2*m+1)+p}, v{Rb+4*(2*m)+p}, s{S_SELHI}")
    def transpose(Rb, Tb, ne=8):
        for m in range(ne // 2): perm_pair(Rb, Tb, m)
    def rowreduce(regs, op, rors=(8, 4, 2, 1)):
        for r in rors:
            for x in regs:
                a(f"{op}_dpp v{x}, v{x}, v{x} row_ror:{r} row_mask:0xf bank_mask:0xf")
    def xrow_reduce(regs, op, tmps):
        for sw in ("v_permlane16_swap_b32", "v_permlane32_swap_b32"):
            for x, t in zip(regs, tmps): a(f"v_mov_b32 v{t}, v{x}")
            for x, t in zip(regs, tmps): a(f"{sw} v{x}, v{t}")
            for x, t in zip(regs, tmps): a(f"{op} v{x}, v{x}, v{t}")
    def tags_ready():
        a(f"""
        s_waitcnt lgkmcnt(0)
        s_add_u32 s79, s78, 1
        s_mul_i32 s79, s79, 9
        s_mul_i32 s37, s79, 0x9E3779B1
        s_add_u32 s79, s79, s38
        s_mul_i32 s36, s79, 0x9E3779B1
        s_and_b32 s{TL}, s36, 0xff
        s_bfe_u32 s{TL+1}, s36, 0x80008
        s_bfe_u32 s{TL+2}, s36, 0x80010
        s_lshr_b32 s{TL+3}, s36, 24
        s_and_b32 s{TG}, s37, 0xff
        s_bfe_u32 s{TG+1}, s37, 0x80008
        s_bfe_u32 s{TG+2}, s37, 0x80010
        s_lshr_b32 s{TG+3}, s37, 24
        """)

    stamp(0)
    a("s_cmp_ge_u32 s2, 256")
    a("s_cbranch_scc1 L_end")
    if opts.get("perm") == 1:
        a("s_lshr_b32 s3, s2, 3"); a("s_lshl_b32 s2, s2, 5"); a("s_or_b32 s2, s2, s3"); a("s_and_b32 s2, s2, 255")
    if opts.get("perm") == 2:
        a("s_cmp_lt_u32 s2, 2"); a("s_cselect_b32 s3, 1, 0"); a("s_xor_b32 s2, s2, s3")
    a("""
    s_load_dwordx16 s[52:67], s[0:1], 0
    s_load_dwordx8 s[68:75], s[0:1], 64
    s_load_dwordx2 s[76:77], s[0:1], 96
    s_memrealtime s[32:33]
    s_getreg_b32 s38, hwreg(HW_REG_XCC_ID)
    v_lshrrev_b32 v1, 6, v0
    v_and_b32 v0, 63, v0
    v_readfirstlane_b32 s3, v1
    v_and_b32 v1, 15, v0
    v_lshrrev_b32 v2, 4, v0
    v_mov_b32 v3, 0xffffff00
    v_lshlrev_b32 v4, 4, v0
    s_and_b32 s38, s38, 7
    s_add_u32 s38, s38, 1
    s_and_b32 s30, s2, 7
    s_lshr_b32 s31, s2, 5
    s_and_b32 s83, s2, 1
    s_sub_u32 s29, 4, s83
    s_lshr_b32 s28, s30, 1
    s_mul_i32 s28, s28, 7
    s_lshl_b32 s83, s83, 2
    s_add_u32 s39, s28, s83
    s_lshl_b32 s28, s39, 3
    s_mul_i32 s83, s31, s29
    s_add_u32 s28, s28, s83
    s_lshl_b32 s28, s28, 3
    s_mov_b32 s80, 0x05040100
    s_mov_b32 s81, 0x07060302
    """)
    if stamps:
        for i in range(1, 8): a(f"s_mov_b64 s[{86+2*i}:{87+2*i}], 0")
    if opts.get("kearly"):
        a("s_cmp_lg_u32 s3, 3")
        a("s_cbranch_scc1 L_noinit")
        a(f"""
        v_mov_b32 v8, 0
        v_lshlrev_b32 v9, 2, v0
        ds_write_b32 v9, v8 offset:{L_CNT}
        s_waitcnt lgkmcnt(0)
        """)
        a.label("L_noinit")
        a("s_barrier")
    a("s_cmp_ge_u32 s3, 12")
    a("s_cbranch_scc1 L_cw")
    a("s_cmp_ge_u32 s3, 4")
    a("s_cbranch_scc1 L_attn")
    a("s_cmp_eq_u32 s3, 3")
    a("s_cbranch_scc1 L_h3")

    def ws_setup():
        a("s_load_dword s78, s[76:77], 0")
        mk_srd(SW, 76, 0x20000000)

    a("""
    v_and_b32 v5, 1, v1
    v_lshlrev_b32 v5, 10, v5
    v_bfe_u32 v6, v1, 1, 1
    v_lshl_add_u32 v5, v6, 6, v5
    v_lshl_add_u32 v5, v2, 4, v5
    v_lshrrev_b32 v6, 3, v1
    v_lshlrev_b32 v6, 2, v6
    v_add_u32 v6, v6, v2
    v_lshlrev_b32 v6, 3, v6
    v_and_b32 v7, 7, v1
    v_lshlrev_b32 v7, 4, v7
    s_mov_b32 s42, 0
    """)
    a("s_cmp_eq_u32 s3, 0")
    a("s_cbranch_scc0 L_h12")
    W0, T0, ACC, XA, PUB = 16, 80, 16, 112, 100
    def tile_loads(stride, nblk):
        for t in range(nblk):
            a(f"buffer_load_dwordx4 v[{XA+4*t}:{XA+4*t+3}], v5, {srd(SA)}, s83 offen offset:{128*t}")
        for t in range(nblk):
            for e in range(8):
                r = W0 + 4 * (8 * t + e)
                a(f"buffer_load_dwordx4 v[{r}:{r+3}], v8, {srd(SB)}, s82 offen nt")
                if not (t == nblk - 1 and e == 7):
                    a(f"s_add_u32 s82, s82, {stride if e < 7 else 57 * stride}")
    def tile_compute(nblk):
        for t in range(nblk):
            a(f"s_waitcnt vmcnt({8*(nblk-1-t)})")
            transpose(W0 + 32 * t, T0)
            for dd in range(8):
                c = f"v[{ACC+4*dd}:{ACC+4*dd+3}]" if t else "0"
                a(f"v_mfma_f32_16x16x32_bf16 v[{ACC+4*dd}:{ACC+4*dd+3}], v[{XA+4*t}:{XA+4*t+3}], v[{T0+4*dd}:{T0+4*dd+3}], {c}")
        tags_ready()
        for G in range(4):
            b, half = G >> 1, G & 1
            exec_rows(G)
            for m in range(4):
                d = ACC + 4 * (4 * half + m)
                a(f"v_add_f32_dpp v{PUB+m}, v{d+2+b}, v{d+b} row_ror:8 row_mask:0xf bank_mask:0xf")
        exec_all()
    def pub_store(T, mod):
        for m in range(4):
            a(f"v_and_or_b32 v{PUB+m}, v{PUB+m}, v3, s{T+m}")
        exec_set(0x00FF00FF, 0x00FF00FF)
        a(f"buffer_store_dwordx4 v[{PUB}:{PUB+3}], v{PUB+4}, {srd(SW)}, s41 offen {mod}")
        exec_all()
    def pub_restore():
        sk = U("L_nr")
        a("s_cmp_eq_u32 s40, 0")
        a(f"s_cbranch_scc1 {sk}")
        pub_store(TG, "sc1")
        a.label(sk)

    a("""
    v_lshlrev_b32 v8, 13, v6
    v_add_u32 v8, v8, v7
    s_bfe_u32 s84, s2, 0x20003
    s_lshl_b32 s85, s30, 3
    s_add_u32 s85, s85, s31
    s_lshl_b32 s82, s84, 20
    s_lshl_b32 s83, s85, 7
    s_add_u32 s82, s82, s83
    s_lshl_b32 s83, s84, 8
    s_waitcnt lgkmcnt(0)
    """)
    mk_srd(SA, 52, 2048)
    mk_srd(SB, 58, 4194304)
    tile_loads(8192, 2)
    if not opts.get("kearly"): a("s_barrier")
    ws_setup()
    a(f"""
    v_lshrrev_b32 v12, 1, v2
    v_lshlrev_b32 v12, 14, v12
    v_and_b32 v13, 1, v2
    v_lshl_add_u32 v12, v13, 4, v12
    v_lshl_add_u32 v{PUB+4}, v7, 1, v12
    s_lshl_b32 s41, s84, 15
    s_lshl_b32 s83, s85, 8
    s_add_u32 s41, s41, s83
    s_add_u32 s41, s41, {WS_QP}
    s_mov_b32 s40, 1
    """)
    tile_compute(2)
    a(f"v_lshl_add_u32 v{PUB+4}, v7, 1, v12")
    pub_store(TL, "")
    if opts.get("hint", False):
        a(f"""
        v_lshlrev_b32 v8, 7, v0
        v_mov_b32 v9, s36
        s_lshl_b32 s82, s30, 11
        s_lshr_b32 s83, s2, 3
        s_lshl_b32 s83, s83, 2
        s_add_u32 s82, s82, s83
        s_add_u32 s82, s82, {WS_FL}
        """)
        exec_set(0xFFFF, 0)
        a(f"buffer_store_dword v9, v8, {srd(SW)}, s82 offen")
        exec_all()
    stamp(1)
    a("s_mov_b32 s43, 0")
    a("s_branch L_qgather")

    a.label("L_h12")
    a("""
    s_movk_i32 s82, 3584
    v_mul_lo_u32 v8, v6, s82
    v_add_u32 v8, v8, v7
    s_bfe_u32 s84, s2, 0x30003
    s_lshr_b32 s43, s2, 6
    s_add_u32 s85, s39, s43
    s_mul_i32 s82, s84, 229376
    s_lshl_b32 s83, s85, 7
    s_add_u32 s82, s82, s83
    s_lshl_b32 s83, s84, 7
    s_mov_b32 s40, 0
    s_waitcnt lgkmcnt(0)
    """)
    mk_srd(SA, 52, 2048)
    a(f"""
    s_cmp_eq_u32 s3, 1
    s_cselect_b32 s{SB}, s64, s66
    s_cselect_b32 s{SB+1}, s65, s67
    s_and_b32 s{SB+1}, s{SB+1}, 0xffff
    s_mov_b32 s{SB+2}, 1835008
    s_mov_b32 s{SB+3}, 0x20000
    """)
    a("s_cmp_eq_u32 s3, 1")
    a("s_cbranch_scc1 L_h12a")
    mk_srd(SC, 70, 1024)
    a(f"""
    buffer_load_dwordx4 v[116:119], v4, {srd(SA)}, 0 offen
    buffer_load_dwordx4 v[120:123], v4, {srd(SA)}, 0 offen offset:1024
    buffer_load_dwordx4 v[124:127], v4, {srd(SC)}, 0 offen
    """)
    a.label("L_h12a")
    if opts.get("gu_late", False):
        a("s_barrier")
        ws_setup()
        lds_wait(C_K, 8, 10, sleep=1)
    a("s_cmp_ge_u32 s43, s29")
    a("s_cbranch_scc1 L_h12_skip")
    tile_loads(3584, 1)
    a.label("L_h12_skip")
    if opts.get("gu_late", False):
        lds_add(C_K, 10)
    else:
        if not opts.get("kearly"): a("s_barrier")
        ws_setup()
    a("s_cmp_ge_u32 s43, s29")
    a("s_cbranch_scc1 L_h12_none")
    a(f"""
    v_lshrrev_b32 v12, 1, v2
    v_mul_u32_u24 v12, 7168, v12
    v_and_b32 v13, 1, v2
    v_lshl_add_u32 v12, v13, 4, v12
    s_mul_i32 s41, s84, 14336
    s_lshl_b32 s83, s85, 8
    s_add_u32 s41, s41, s83
    s_sub_u32 s83, s3, 1
    s_lshl_b32 s83, s83, 17
    s_add_u32 s41, s41, s83
    s_add_u32 s41, s41, {WS_GP}
    s_mov_b32 s40, 1
    """)
    tile_compute(1)
    a(f"v_lshl_add_u32 v{PUB+4}, v7, 1, v12")
    pub_store(TL, "")
    stamp(1)
    a("s_branch L_h12_done")
    a.label("L_h12_none")
    a(f"v_mov_b32 v{PUB+4}, 0")
    a(f"s_mov_b32 s41, {WS_STAMP}")
    tags_ready()
    a.label("L_h12_done")
    a("s_cmp_eq_u32 s3, 2")
    a("s_cbranch_scc1 L_ffn")
    lds_add(C_Q, 8)
    a("s_branch L_hrel")

    a.label("L_qgather")
    a(f"""
    s_and_b32 s82, s2, 15
    s_lshl_b32 s82, s82, 11
    s_lshl_b32 s83, s43, 10
    s_add_u32 s82, s82, s83
    s_add_u32 s82, s82, {WS_QP}
    s_add_u32 s83, s82, 32768
    s_add_u32 s84, s82, 65536
    s_add_u32 s85, s82, 98304
    """)
    if opts.get("hint", False):
        wait_until(opts.get("hint0", 200))
        a(f"""
        s_lshl_b32 s44, s30, 11
        s_add_u32 s44, s44, {WS_FL}
        s_add_u32 s44, s76, s44
        s_addc_u32 s45, s77, 0
        s_mov_b32 s46, s36
        s_mov_b32 s47, s36
        s_mov_b32 s79, 0
        """)
        a.label("L_hint")
        a("s_load_dwordx16 s[52:67], s[44:45], 0")
        a("s_load_dwordx8 s[4:11], s[44:45], 64")
        a("s_load_dwordx8 s[86:93], s[44:45], 96" if not stamps else "s_load_dwordx4 s[12:15], s[44:45], 96")
        if stamps: a("s_load_dwordx4 s[48:51], s[44:45], 112")
        a(f"s_sleep {opts.get('hsleep', 5)}")
        a("s_add_u32 s44, s44, 128")
        a("s_addc_u32 s45, s45, 0")
        a("s_add_u32 s79, s79, 1")
        a("s_waitcnt lgkmcnt(0)")
        prs = list(range(52, 68, 2)) + list(range(4, 12, 2)) + (list(range(86, 94, 2)) if not stamps else [12, 14, 48, 50])
        for n, p in enumerate(prs):
            a(f"s_xor_b64 s[{p}:{p+1}], s[{p}:{p+1}], s[46:47]")
            if n: a(f"s_or_b64 s[52:53], s[52:53], s[{p}:{p+1}]")
        a("s_cbranch_scc0 L_hintok")
        a("s_cmp_lt_u32 s79, 16")
        a("s_cbranch_scc1 L_hint")
        a.label("L_hintok")
    else:
        wait_until(opts.get("qat", 330))
    qloads = [f"buffer_load_dwordx4 v[{16+4*ks}:{19+4*ks}], v4, {srd(SW)}, s{82+ks} offen sc1" for ks in range(4)]
    for l in qloads: a(l)
    lds_add(C_G, 8)
    poll(qloads, [16, 20, 24, 28], (8, 9, 10, 11, 12), on_timeout=pub_restore, slowflag=42, issued=True)
    for m in range(4):
        a(f"v_add_f32 v{16+m}, v{16+m}, v{20+m}")
        a(f"v_add_f32 v{24+m}, v{24+m}, v{28+m}")
    for m in range(4): a(f"v_add_f32 v{16+m}, v{16+m}, v{24+m}")
    a(f"""
    v_cvt_pk_bf16_f32 v8, v16, v17
    v_cvt_pk_bf16_f32 v9, v18, v19
    v_lshlrev_b32 v10, 3, v0
    s_lshl_b32 s82, s43, 9
    v_add_u32 v10, s82, v10
    ds_write_b64 v10, v[8:9] offset:{L_Q}
    s_waitcnt lgkmcnt(0)
    """)
    lds_add(C_Q, 8)
    stamp(2)
    a("s_cmp_eq_u32 s3, 3")
    a("s_cbranch_scc1 L_h3b")
    a.label("L_hrel")
    a("s_cmp_eq_u32 s42, 1")
    a("s_cbranch_scc1 L_fin")
    release_wait(pub_restore, 8)

    a.label("L_ffn")
    lds_add(C_Q, 8)
    a(f"""
    v_and_b32 v8, 7, v0
    v_mul_u32_u24 v8, 14336, v8
    v_lshrrev_b32 v9, 3, v0
    v_lshl_add_u32 v8, v9, 4, v8
    s_lshl_b32 s82, s28, 2
    s_add_u32 s82, s82, {WS_GP}
    s_add_u32 s83, s82, 7168
    s_add_u32 s84, s82, {WS_UP-WS_GP}
    s_add_u32 s85, s84, 7168
    s_waitcnt vmcnt(0)
    v_mov_b32 v14, 0
    v_mov_b32 v15, 0
    """)
    for m in range(4):
        a(f"v_dot2_f32_bf16 v14, v{116+m}, v{124+m}, v14")
        a(f"v_dot2_f32_bf16 v15, v{120+m}, v{124+m}, v15")
    a("s_nop 3")
    rowreduce([14, 15], "v_add_f32")
    xrow_reduce([14, 15], "v_add_f32", [10, 11])
    a("""
    v_mul_f32 v14, 0xbfb8aa3b, v14
    v_mul_f32 v15, 0xbfb8aa3b, v15
    v_exp_f32 v14, v14
    v_exp_f32 v15, v15
    v_add_f32 v14, 1.0, v14
    v_add_f32 v15, 1.0, v15
    v_rcp_f32 v14, v14
    v_rcp_f32 v15, v15
    """)
    for m in range(16): a(f"v_mov_b32 v{16+m}, 0")
    if opts.get("hint", False):
        lds_wait(C_G, 2, 10, sleep=2)
        a(f"s_sleep {opts.get('hdel', 12)}")
    else:
        wait_until(opts.get("hat", 400))
    a("s_cmp_eq_u32 s29, 4")
    a("s_cselect_b32 exec_hi, -1, 0xffff")
    poll([f"buffer_load_dwordx4 v[{16+4*x}:{19+4*x}], v8, {srd(SW)}, s{82+x} offen sc1" for x in range(4)],
         [16, 20, 24, 28], (9, 10, 11, 12, 13), on_timeout=pub_restore, slowflag=42)
    for ctl in ("quad_perm:[1,0,3,2]", "quad_perm:[2,3,0,1]", "row_half_mirror"):
        for m in range(16):
            a(f"v_add_f32_dpp v{16+m}, v{16+m}, v{16+m} {ctl} row_mask:0xf bank_mask:0xf")
    for m in range(8): a(f"v_mul_f32 v{32+m}, 0xbfb8aa3b, v{16+m}")
    for m in range(8): a(f"v_exp_f32 v{32+m}, v{32+m}")
    for m in range(8): a(f"v_add_f32 v{32+m}, 1.0, v{32+m}")
    for m in range(8): a(f"v_rcp_f32 v{32+m}, v{32+m}")
    for m in range(8): a(f"v_mul_f32 v{16+m}, v{16+m}, v{24+m}")
    for m in range(8): a(f"v_mul_f32 v{16+m}, v{16+m}, v{32+m}")
    a("v_sub_f32 v10, 1.0, v14")
    a("v_sub_f32 v11, 1.0, v15")
    for m in range(4): a(f"v_mul_f32 v{16+m}, v{16+m}, v10")
    for m in range(4): a(f"v_mul_f32 v{20+m}, v{20+m}, v11")
    a(f"""
    v_lshrrev_b32 v9, 3, v0
    v_lshlrev_b32 v9, 4, v9
    v_mov_b32 v12, 0
    """)
    exec_set(0x01010101, 0x01010101)
    a(f"ds_write_b128 v9, v[16:19] offset:{L_H}")
    a(f"ds_write_b128 v9, v[20:23] offset:{L_H+128}")
    exec_set(1, 0)
    a(f"ds_write_b64 v12, v[14:15] offset:{L_G}")
    exec_all()
    a("s_waitcnt lgkmcnt(0)")
    lds_add(C_H, 8)
    stamp(2)
    a("s_branch L_hrel")

    a.label("L_h3")
    if not opts.get("kearly"):
        a(f"""
        v_lshlrev_b32 v9, 2, v0
        v_mov_b32 v8, 0
        ds_write_b32 v9, v8 offset:{L_CNT}
        s_waitcnt lgkmcnt(0)
        s_barrier
        """)
    else:
        a("s_waitcnt lgkmcnt(0)")
    ws_setup()
    tags_ready()
    a(f"""
    s_mov_b32 s43, 1
    s_mov_b32 s40, 0
    s_mov_b32 s42, 0
    v_mov_b32 v{PUB+4}, 0
    s_mov_b32 s41, {WS_STAMP}
    s_branch L_qgather
    """)
    a.label("L_h3b")
    a("s_cmp_ge_u32 s2, 32")
    a("s_cbranch_scc1 L_fin")
    mk_srd(SC, 72, 2048)
    a(f"""
    v_lshrrev_b32 v8, 3, v0
    v_lshlrev_b32 v8, 10, v8
    v_and_b32 v9, 7, v0
    v_lshl_add_u32 v48, v9, 4, v8
    s_lshr_b32 s82, s2, 3
    s_lshl_b32 s82, s82, 16
    s_lshl_b32 s83, s30, 7
    s_add_u32 s82, s82, s83
    s_add_u32 s82, s82, {WS_YP}
    v_lshlrev_b32 v8, 3, v0
    s_bfe_u32 s84, s2, 0x10002
    s_lshl_b32 s84, s84, 10
    s_lshr_b32 s83, s2, 3
    s_lshl_b32 s83, s83, 8
    s_add_u32 s84, s84, s83
    s_and_b32 s83, s2, 3
    s_lshl_b32 s83, s83, 6
    s_add_u32 s84, s84, s83
    s_add_u32 s85, s78, 1
    v_mov_b32 v5, s85
    v_mov_b32 v6, 0
    """)
    for i in range(1, 8): a(f"v_add_u32 v{48+i}, {8192*i}, v48")
    lds_wait(C_Y if opts.get("ywait", True) else C_O, 4 if opts.get("ywait", True) else 8, 10, sleep=2)
    stamp(4)
    poll([f"buffer_load_dwordx4 v[{16+4*i}:{19+4*i}], v{48+i}, {srd(SW)}, s82 offen sc1" for i in range(8)],
         [16 + 4 * i for i in range(8)], (9, 10, 11), T=TG)
    stamp(5)
    for st in (4, 2, 1):
        for i in range(st):
            for m in range(4): a(f"v_add_f32 v{16+4*i+m}, v{16+4*i+m}, v{16+4*(i+st)+m}")
    rowreduce([16, 17, 18, 19], "v_add_f32", (8,))
    xrow_reduce([16, 17, 18, 19], "v_add_f32", [20, 21, 22, 23])
    a("v_cvt_pk_bf16_f32 v16, v16, v17")
    a("v_cvt_pk_bf16_f32 v17, v18, v19")
    exec_set(0xFF, 0)
    a(f"buffer_store_dwordx2 v[16:17], v8, {srd(SC)}, s84 offen")
    a("s_cmp_lg_u32 s2, 0")
    a("s_cbranch_scc1 L_noepoch")
    exec_set(1, 0)
    a(f"buffer_store_dword v5, v6, {srd(SW)}, 0 offen sc1")
    a.label("L_noepoch")
    exec_all()
    stamp(7)
    a("s_branch L_fin")

    a.label("L_cw")
    WC, TC, D, PL, AO = 16, 40, 72, 104, 112
    a(f"""
    s_sub_u32 s84, s3, 12
    v_lshlrev_b32 v8, 15, v2
    v_lshl_add_u32 v8, v1, 4, v8
    v_lshlrev_b32 v9, 10, v2
    v_lshl_add_u32 v9, v1, 4, v9
    s_lshl_b32 s82, s30, 2
    s_add_u32 s82, s82, s84
    s_lshl_b32 s82, s82, 17
    s_lshl_b32 s83, s31, 10
    s_add_u32 s82, s82, s83
    s_bfe_u32 s85, s2, 0x20003
    s_lshl_b32 s85, s85, 8
    s_add_u32 s82, s82, s85
    s_lshl_b32 s79, s84, 3
    s_add_u32 s83, s28, s79
    s_lshl_b32 s83, s83, 10
    s_add_u32 s83, s83, s85
    s_waitcnt lgkmcnt(0)
    """)
    mk_srd(SA, 60, 4194304)
    mk_srd(SB, 68, 1835008)
    if not opts.get("kearly"): a("s_barrier")
    ws_setup()
    tags_ready()
    lds_add(C_Q, 10)
    lds_wait(C_V, 8, 10, sleep=4)
    for e in range(4):
        a(f"buffer_load_dwordx4 v[{WC+4*e}:{WC+4*e+3}], v8, {srd(SA)}, s82 offen nt")
        if e < 3: a("s_add_u32 s82, s82, 8192")
    a(f"buffer_load_dwordx4 v[{WC+16}:{WC+19}], v9, {srd(SB)}, s83 offen nt")
    a("s_add_u32 s83, s83, 4096")
    a(f"buffer_load_dwordx4 v[{WC+20}:{WC+23}], v9, {srd(SB)}, s83 offen nt")
    stamp(1)
    a(f"""
    v_and_b32 v8, 1, v1
    v_lshlrev_b32 v8, 7, v8
    v_lshrrev_b32 v9, 1, v1
    v_add_u32 v8, v8, v9
    v_lshlrev_b32 v8, 11, v8
    v_lshl_add_u32 v9, v2, 4, v8
    s_lshl_b32 s82, s30, 15
    s_lshl_b32 s83, s31, 8
    s_add_u32 s82, s82, s83
    s_lshl_b32 s79, s84, 6
    s_add_u32 s82, s82, s79
    s_add_u32 s82, s82, {WS_OP}
    s_add_u32 s83, s82, 16384
    v_lshrrev_b32 v12, 1, v2
    v_lshlrev_b32 v12, 9, v12
    v_and_b32 v13, 1, v2
    v_lshl_add_u32 v12, v13, 4, v12
    v_lshl_add_u32 v12, v1, 5, v12
    s_lshl_b32 s79, s84, 10
    v_add_u32 v13, s79, v12
    s_bfe_u32 s40, s2, 0x20003
    s_lshl_b32 s40, s40, 6
    s_lshl_b32 s79, s30, 3
    s_add_u32 s40, s40, s79
    s_add_u32 s40, s40, s31
    s_lshl_b32 s40, s40, 10
    s_add_u32 s40, s40, {WS_YP}
    s_mov_b32 s42, 0
    """)
    for dd in range(8): a(f"v_mov_b32 v{TC+4*dd+3}, 0")
    lds_wait(C_H, 1, 10, sleep=4)
    a(f"""
    v_and_b32 v8, 1, v1
    v_lshlrev_b32 v14, 2, v8
    v_lshlrev_b32 v8, 7, v8
    v_lshl_add_u32 v8, v2, 2, v8
    s_lshl_b32 s79, s84, 5
    v_add_u32 v8, s79, v8
    ds_read_b32 v10, v8 offset:{L_H}
    ds_read_b32 v11, v8 offset:{L_H+16}
    ds_read_b32 v118, v14 offset:{L_G}
    v_lshlrev_b32 v8, 3, v2
    s_waitcnt lgkmcnt(0)
    v_cvt_pk_bf16_f32 v{AO+2}, v10, v11
    v_mov_b32 v{AO+3}, 0
    """)
    oloads = [f"buffer_load_dwordx4 v[{PL}:{PL+3}], v9, {srd(SW)}, s82 offen sc1",
              f"buffer_load_dwordx4 v[{PL+4}:{PL+7}], v9, {srd(SW)}, s83 offen sc1"]
    a("s_waitcnt vmcnt(0)")
    stamp(2)
    for l in oloads: a(l)
    transpose(WC, TC, 6)
    poll(oloads, [PL, PL + 4], (5, 6, 7, 10, 11), on_timeout=lambda: None, issued=True, slowflag=42)
    stamp(3)
    for h, x in ((0, 116), (4, 117)):
        a(f"v_bfe_u32 v{x}, v{PL+h}, 8, 2")
        a(f"v_bfe_u32 v5, v{PL+h+1}, 8, 2")
        a(f"v_bfe_u32 v6, v{PL+h+2}, 8, 2")
        a(f"v_bfe_u32 v7, v{PL+h+3}, 8, 2")
        a(f"v_lshl_or_b32 v{x}, v5, 2, v{x}")
        a(f"v_lshl_or_b32 v6, v7, 2, v6")
        a(f"v_lshl_or_b32 v{x}, v6, 4, v{x}")
        a(f"v_lshlrev_b32 v{x}, v8, v{x}")
    xrow_reduce([116, 117], "v_or_b32", [5, 6])
    a("v_max_f32 v5, v116, v117")
    rowreduce([5], "v_max_f32", (8, 4, 2))
    a(f"""
    v_sub_f32 v116, v116, v5
    v_sub_f32 v117, v117, v5
    v_exp_f32 v116, v116
    v_exp_f32 v117, v117
    v_add_f32 v6, v116, v117
    """)
    for m in range(4): a(f"v_mul_f32 v{PL+m}, v116, v{PL+m}")
    for m in range(4): a(f"v_fmac_f32 v{PL+m}, v117, v{PL+4+m}")
    rowreduce([6, PL, PL + 1, PL + 2, PL + 3], "v_add_f32", (8, 4, 2))
    a("v_rcp_f32 v6, v6")
    a("v_mul_f32 v6, v6, v118")
    for m in range(4): a(f"v_mul_f32 v{PL+m}, v6, v{PL+m}")
    a(f"v_cvt_pk_bf16_f32 v{AO}, v{PL}, v{PL+1}")
    a(f"v_cvt_pk_bf16_f32 v{AO+1}, v{PL+2}, v{PL+3}")
    stamp(4)
    for dd in range(8):
        a(f"v_mfma_f32_16x16x32_bf16 v[{D+4*dd}:{D+4*dd+3}], v[{AO}:{AO+3}], v[{TC+4*dd}:{TC+4*dd+3}], 0")
    for G in (0, 2, 1, 3):
        b, half = G >> 1, G & 1
        exec_rows(G)
        for m in range(4):
            a(f"v_mov_b32 v{16+m}, v{D+4*(4*half+m)+b}")
    exec_all()
    a(f"ds_write_b128 v13, v[16:19] offset:{L_Y}")
    a("s_waitcnt lgkmcnt(0)")
    lds_add_rtn(C_Y, 5)
    stamp(5)
    a("s_cmp_lg_u32 s79, 3")
    a("s_cbranch_scc1 L_crel")
    for x in range(4):
        a(f"ds_read_b128 v[{20+4*x}:{23+4*x}], v12 offset:{L_Y+1024*x}")
    a("s_waitcnt lgkmcnt(0)")
    for m in range(4):
        a(f"v_add_f32 v{20+m}, v{20+m}, v{24+m}")
        a(f"v_add_f32 v{28+m}, v{28+m}, v{32+m}")
    for m in range(4): a(f"v_add_f32 v{20+m}, v{20+m}, v{28+m}")
    for m in range(4): a(f"v_and_or_b32 v{20+m}, v{20+m}, v3, s{TG+m}")
    a(f"buffer_store_dwordx4 v[20:23], v12, {srd(SW)}, s40 offen sc1")
    stamp(6)
    a.label("L_crel")
    a("s_cmp_eq_u32 s42, 1")
    a("s_cbranch_scc1 L_fin")
    lds_op("ds_max_u32", C_REL, 1, 5)
    a("s_branch L_fin")

    a.label("L_attn")
    KR, VR, QB, SR, PR, FAC = 16, 48, 80, 96, 104, 108
    a("""
    s_sub_u32 s84, s3, 4
    s_and_b32 s82, s2, 15
    s_lshr_b32 s83, s2, 4
    s_lshl_b32 s85, s82, 4
    s_add_u32 s85, s85, s83
    s_lshl_b32 s82, s82, 23
    s_add_u32 s82, s82, 0x700000
    s_lshl_b32 s83, s83, 16
    s_add_u32 s82, s82, s83
    s_lshl_b32 s83, s84, 13
    s_add_u32 s82, s82, s83
    s_add_u32 s83, s82, 4096
    v_lshlrev_b32 v5, 8, v1
    v_lshl_add_u32 v5, v2, 4, v5
    v_lshlrev_b32 v6, 10, v2
    v_lshl_add_u32 v6, v1, 4, v6
    s_waitcnt lgkmcnt(0)
    """)
    mk_srd(SA, 54, 134217728)
    mk_srd(SB, 56, 134217728)
    if not opts.get("kearly"): a("s_barrier")
    for T in range(2):
        for jj in range(4):
            r = KR + 4 * (4 * T + jj)
            a(f"buffer_load_dwordx4 v[{r}:{r+3}], v5, {srd(SA)}, s{82+T} offen offset:{64*jj} nt")
    lds_add(C_K, 8)
    ws_setup()
    lds_wait(C_K, 10 if opts.get("gu_late", False) else 8, 8, sleep=1)
    if opts.get("vgate", 8) < 8:
        a(f"s_cmp_lt_u32 s84, {opts['vgate']}")
        a("s_cbranch_scc1 L_vgo")
        lds_wait(C_G, 2, 8, sleep=1)
        a.label("L_vgo")
    for e in range(8):
        r = VR + 4 * e
        a(f"buffer_load_dwordx4 v[{r}:{r+3}], v6, {srd(SB)}, s{82+(e>>2)} offen offset:{256*(e&3)} nt")
    lds_add(C_V, 8)
    stamp(1)
    tags_ready()
    a(f"""
    v_and_b32 v6, 3, v1
    v_lshlrev_b32 v6, 8, v6
    v_lshl_add_u32 v6, v2, 4, v6
    s_mov_b32 s42, 0
    v_lshlrev_b32 v13, 6, v1
    v_lshl_add_u32 v13, v2, 4, v13
    s_lshl_b32 s79, s84, 11
    v_add_u32 v13, s79, v13
    v_lshlrev_b32 v5, 2, v0
    s_lshl_b32 s79, s84, 8
    v_add_u32 v5, s79, v5
    v_mov_b32 v7, 0xfffffc00
    s_lshl_b32 s41, s85, 11
    s_add_u32 s41, s41, {WS_OP}
    v_and_b32 v14, 3, v0
    v_lshlrev_b32 v14, 3, v14
    v_lshrrev_b32 v15, v14, s37
    v_lshrrev_b32 v14, v14, s36
    v_and_b32 v14, 0xff, v14
    v_and_b32 v15, 0xff, v15
    """)
    lds_wait(C_Q, 8, 8, sleep=2)
    stamp(2)
    for jj in range(4):
        a(f"ds_read_b128 v[{QB+4*jj}:{QB+4*jj+3}], v6 offset:{L_Q+64*jj}")
    a("s_waitcnt vmcnt(8) lgkmcnt(0)")
    stamp(3)
    for jj in range(4):
        for T in range(2):
            c = f"v[{SR+4*T}:{SR+4*T+3}]" if jj else "0"
            r = KR + 4 * (4 * T + jj)
            a(f"v_mfma_f32_16x16x32_bf16 v[{SR+4*T}:{SR+4*T+3}], v[{r}:{r+3}], v[{QB+4*jj}:{QB+4*jj+3}], {c}")
    a("s_mov_b32 s79, 0x3e0293ee")
    for x in range(8): a(f"v_mul_f32 v{SR+x}, s79, v{SR+x}")
    a(f"v_max3_f32 v8, v{SR}, v{SR+1}, v{SR+2}")
    a(f"v_max3_f32 v8, v8, v{SR+3}, v{SR+4}")
    a(f"v_max3_f32 v8, v8, v{SR+5}, v{SR+6}")
    a(f"v_max_f32 v8, v8, v{SR+7}")
    xrow_reduce([8], "v_max_f32", [10])
    for x in range(8): a(f"v_sub_f32 v{SR+x}, v{SR+x}, v8")
    for x in range(8): a(f"v_exp_f32 v{SR+x}, v{SR+x}")
    a(f"v_add_f32 v9, v{SR}, v{SR+1}")
    for x in range(2, 8): a(f"v_add_f32 v9, v9, v{SR+x}")
    for x in range(4): a(f"v_cvt_pk_bf16_f32 v{PR+x}, v{SR+2*x}, v{SR+2*x+1}")
    xrow_reduce([9], "v_add_f32", [10])
    a(f"""
    v_lshlrev_b32 v10, 3, v0
    s_lshl_b32 s79, s84, 5
    v_add_u32 v10, s79, v10
    """)
    exec_set(0xF, 0)
    a(f"ds_write_b64 v10, v[8:9] offset:{L_ML}")
    exec_all()
    a("s_waitcnt lgkmcnt(0)")
    lds_add(C_ML, 10)
    def factors():
        a("v_lshlrev_b32 v8, 3, v2")
        for x in range(8):
            a(f"ds_read_b64 v[{QB+2*x}:{QB+2*x+1}], v8 offset:{L_ML+32*x}")
        a("s_waitcnt lgkmcnt(0)")
        a(f"v_max3_f32 v9, v{QB}, v{QB+2}, v{QB+4}")
        a(f"v_max3_f32 v9, v9, v{QB+6}, v{QB+8}")
        a(f"v_max3_f32 v9, v9, v{QB+10}, v{QB+12}")
        a(f"v_max_f32 v9, v9, v{QB+14}")
        for x in range(8): a(f"v_sub_f32 v{FAC+x}, v{QB+2*x}, v9")
        for x in range(8): a(f"v_exp_f32 v{FAC+x}, v{FAC+x}")
        a(f"v_mul_f32 v117, v{FAC}, v{QB+1}")
        for x in range(1, 8): a(f"v_fmac_f32 v117, v{FAC+x}, v{QB+2*x+1}")
        a("""
        v_log_f32 v116, v117
        v_rcp_f32 v117, v117
        v_add_f32 v116, v116, v9
        v_lshlrev_b32 v8, 1, v1
        v_lshrrev_b32 v116, v8, v116
        v_and_b32 v116, 3, v116
        v_lshl_or_b32 v116, v116, 8, v14
        s_mov_b32 s42, 1
        """)
        for x in range(8): a(f"v_mul_f32 v{FAC+x}, v{FAC+x}, v117")
    lds_wait(C_ML, 8, 10, sleep=1)
    factors()
    a("v_mov_b32 v10, 0")
    a("v_mov_b32 v11, 1")
    for m in range(4):
        a(f"s_waitcnt vmcnt({6-2*m})")
        if m == 3: stamp(4)
        perm_pair(VR, KR, m)
    exec_set(0x000F000F, 0x000F000F)
    for dd in range(8):
        a(f"v_mfma_f32_16x16x32_bf16 v[{VR+4*dd}:{VR+4*dd+3}], v[{KR+4*dd}:{KR+4*dd+3}], v[{PR}:{PR+3}], 0")
    for dd in range(8):
        a(f"ds_write_b128 v13, v[{VR+4*dd}:{VR+4*dd+3}] offset:{L_O+256*dd}")
    exec_set(1, 0)
    a(f"ds_add_u32 v10, v11 offset:{C_O}")
    exec_all()
    stamp(5)
    lds_wait(C_O, 8, 8)
    stamp(6)
    for x in range(8):
        a(f"ds_read_b32 v{QB+x}, v5 offset:{L_O+2048*x}")
    for x in range(8):
        a(f"s_waitcnt lgkmcnt({7-x})" if not stamps else "s_waitcnt lgkmcnt(0)")
        if x == 0: a(f"v_mul_f32 v12, v{FAC}, v{QB}")
        else: a(f"v_fmac_f32 v12, v{FAC+x}, v{QB+x}")
    a("v_and_or_b32 v12, v12, v7, v116")
    a(f"buffer_store_dword v12, v5, {srd(SW)}, s41 offen")
    stamp(7)
    def o_restore():
        a("v_and_or_b32 v12, v12, v3, v15")
        a(f"buffer_store_dword v12, v5, {srd(SW)}, s41 offen sc1")
    release_wait(o_restore, 10)

    for c in cold: c()

    a.label("L_fin")
    if stamps:
        a(f"""
        s_waitcnt lgkmcnt(0) vmcnt(0)
        s_lshl_b32 s82, s2, 4
        s_add_u32 s82, s82, s3
        s_lshl_b32 s82, s82, 6
        s_add_u32 s82, s82, {WS_STAMP}
        v_mov_b32 v4, 0
        """)
        for i in range(16): a(f"v_mov_b32 v{16+i}, s{86+i}")
        exec_set(1, 0)
        for i in range(4):
            a(f"buffer_store_dwordx4 v[{16+4*i}:{19+4*i}], v4, {srd(SW)}, s82 offen offset:{16*i}")
    a.label("L_end")
    a("s_endpgm")
    R('.section .rodata,"a"')
    R(".p2align 6")
    R(f".amdhsa_kernel {NAME}_kernel")
    R("  .amdhsa_next_free_vgpr 128")
    R("  .amdhsa_next_free_sgpr 102")
    R("  .amdhsa_accum_offset 128")
    R("  .amdhsa_group_segment_fixed_size 0")
    R("  .amdhsa_kernarg_size 104")
    R("  .amdhsa_user_sgpr_count 2")
    R("  .amdhsa_user_sgpr_kernarg_segment_ptr 1")
    R("  .amdhsa_system_sgpr_workgroup_id_x 1")
    R(".end_amdhsa_kernel")
    return a.text()

if __name__ == "__main__":
    variants = {
        "z0": dict(),
        "z1": dict(qat=300, hat=380),
        "z2": dict(qat=360, hat=420),
        "z3": dict(vgate=0),
        "z4": dict(qat=300, hat=380, vgate=4),
        "z5": dict(qat=270, hat=360),
    }
    for n, o in variants.items():
        open(f"work/{n}.s", "w").write(gen(False, o))
        open(f"work/{n}s.s", "w").write(gen(True, o))
```

```python
import sys
from asmlib import Asm
NAME = "gated_mix__sliding_block_cached__swiglu_ffn__decode"

WS_FL = 0x10000
WS_QP = 0x20000
WS_GP = 0x40000
WS_UP = 0x60000
WS_YP = 0x80000
WS_OP = 0x100000
WS_STAMP = 0x10000000
L_Q = 0
L_ML = 1024
L_CNT = 1280
C_Q, C_ML, C_O, C_H, C_Y, C_K, C_V, C_REL, C_G = [L_CNT + 4 * i for i in range(9)]
L_H = 1408
L_G = 1664
L_Y = 2048
L_O = 6144
LDS_BYTES = L_O + 8 * 2048
SPIN_MAX = 60000
NWAVES = 16
SA, SB, SC, SW = 4, 8, 12, 16
TL, TG = 20, 24
S_F0, S_NU, S_X8, S_DD0 = 28, 29, 30, 31
S_SELLO, S_SELHI = 80, 81
def srd(b): return f"s[{b}:{b+3}]"

def gen(stamps=False, opts=None):
    opts = opts or {}
    FAST_N = opts.get("fast_n", 150)
    REL_N = opts.get("rel_n", 120)
    a = Asm()
    R = a.raw
    uid = [0]
    def U(p):
        uid[0] += 1
        return f"{p}_{uid[0]}"
    R(f"; @launch grid=(256,1,1) block=({64*NWAVES},1,1) lds={LDS_BYTES}")
    R('.amdgcn_target "amdgcn-amd-amdhsa--gfx950"')
    R(".text")
    R(f".globl {NAME}_kernel")
    R(".p2align 8")
    R(f".type {NAME}_kernel,@function")
    R(f"{NAME}_kernel:")
    def stamp(i):
        if stamps: a(f"s_memrealtime s[{86+2*i}:{87+2*i}]")
    def mk_srd(b, p, size):
        a(f"s_mov_b32 s{b}, s{p}")
        a(f"s_and_b32 s{b+1}, s{p+1}, 0xffff")
        a(f"s_mov_b32 s{b+2}, {size}")
        a(f"s_mov_b32 s{b+3}, 0x20000")
    def exec_set(lo, hi):
        a(f"s_mov_b32 exec_lo, {lo:#x}")
        a(f"s_mov_b32 exec_hi, {hi:#x}")
    def exec_rows(G):
        exec_set((0xFFFF << (16 * G)) & 0xFFFFFFFF if G < 2 else 0, (0xFFFF << (16 * (G - 2))) & 0xFFFFFFFF if G >= 2 else 0)
    def exec_all(): a("s_mov_b64 exec, -1")
    def tagcheck(regs, acc, t0, t1, T):
        first = True
        for q in regs:
            for h in range(2):
                a(f"v_xor_b32 v{t0}, s{T+2*h}, v{q+2*h}")
                a(f"v_xor_b32 v{t1}, s{T+2*h+1}, v{q+2*h+1}")
                if first:
                    a(f"v_or_b32 v{acc}, v{t0}, v{t1}"); first = False
                else:
                    a(f"v_or3_b32 v{acc}, v{acc}, v{t0}, v{t1}")
        a(f"v_and_b32 v{acc}, 0xff, v{acc}")
        a(f"v_cmp_ne_u32 vcc, 0, v{acc}")
    def tagcheck2(regs, acc, t0, t1, t2, t3):
        a(f"v_mov_b32 v{acc}, 0")
        for q in regs:
            for T, x in ((TL, t2), (TG, t3)):
                a(f"v_xor_b32 v{t0}, s{T}, v{q}")
                a(f"v_xor_b32 v{t1}, s{T+1}, v{q+1}")
                a(f"v_or_b32 v{x}, v{t0}, v{t1}")
                a(f"v_xor_b32 v{t0}, s{T+2}, v{q+2}")
                a(f"v_xor_b32 v{t1}, s{T+3}, v{q+3}")
                a(f"v_or3_b32 v{x}, v{x}, v{t0}, v{t1}")
                a(f"v_and_b32 v{x}, 0xff, v{x}")
            a(f"v_min_u32 v{t2}, v{t2}, v{t3}")
            a(f"v_or_b32 v{acc}, v{acc}, v{t2}")
        a(f"v_cmp_ne_u32 vcc, 0, v{acc}")
    def lds_op(op, off, val, vt):
        a(f"v_mov_b32 v{vt}, 0")
        a(f"v_mov_b32 v{vt+1}, {val}")
        a("s_mov_b64 s[46:47], exec")
        exec_set(1, 0)
        a(f"{op} v{vt}, v{vt+1} offset:{off}")
        a("s_mov_b64 exec, s[46:47]")
    def lds_add(off, vt): lds_op("ds_add_u32", off, 1, vt)
    def lds_add_rtn(off, vt):
        a(f"v_mov_b32 v{vt}, 0")
        a(f"v_mov_b32 v{vt+1}, 1")
        exec_set(1, 0)
        a(f"ds_add_rtn_u32 v{vt+1}, v{vt}, v{vt+1} offset:{off}")
        a("s_waitcnt lgkmcnt(0)")
        a(f"v_readfirstlane_b32 s79, v{vt+1}")
        exec_all()
    def lds_wait(off, val, vt, sleep=0):
        lp, ok = U("L_lw"), U("L_lok")
        a("s_mov_b32 s79, 0")
        a(f"v_mov_b32 v{vt+1}, 0")
        a.label(lp)
        a(f"ds_read_b32 v{vt}, v{vt+1} offset:{off}")
        a("s_waitcnt lgkmcnt(0)")
        a(f"v_cmp_gt_u32 vcc, {val}, v{vt}")
        a(f"s_cbranch_vccz {ok}")
        if sleep: a(f"s_sleep {sleep}")
        a(f"s_add_u32 s79, s79, 1")
        a(f"s_cmp_lt_u32 s79, {SPIN_MAX*16}")
        a(f"s_cbranch_scc1 {lp}")
        a.label(ok)
    cold = []
    def poll(loads, regs, tmps, T=TL, on_timeout=None, issued=False, between=None, slowflag=None):
        lp, ok, wt = U("L_poll"), U("L_pok"), U("L_pwt")
        a("s_mov_b32 s79, 0")
        if issued: a(f"s_branch {wt}")
        a.label(lp)
        for l in loads: a(l)
        if issued: a.label(wt)
        a("s_waitcnt vmcnt(0)")
        tagcheck(regs, tmps[0], tmps[1], tmps[2], T)
        a(f"s_cbranch_vccz {ok}")
        a("s_mov_b64 exec, vcc")
        a(f"s_add_u32 s79, s79, 1")
        a(f"s_cmp_lt_u32 s79, {FAST_N if on_timeout else SPIN_MAX}")
        a(f"s_cbranch_scc1 {lp}")
        if on_timeout:
            sl = U("L_slow")
            a(f"s_branch {sl}")
            def slow():
                a.label(sl)
                a("s_mov_b64 s[44:45], exec")
                exec_all()
                lds_op("ds_max_u32", C_REL, 2, tmps[0])
                on_timeout()
                if slowflag: a(f"s_mov_b32 s{slowflag}, 1")
                a("s_mov_b64 exec, s[44:45]")
                a("s_mov_b32 s79, 0")
                lp2 = U("L_sp")
                a.label(lp2)
                for l in loads: a(l)
                a("s_waitcnt vmcnt(0)")
                tagcheck2(regs, *tmps)
                a(f"s_cbranch_vccz {ok}")
                a("s_mov_b64 exec, vcc")
                a("s_sleep 4")
                a(f"s_add_u32 s79, s79, 1")
                a(f"s_cmp_lt_u32 s79, {SPIN_MAX}")
                a(f"s_cbranch_scc1 {lp2}")
                a(f"s_branch {ok}")
            cold.append(slow)
        a.label(ok)
        exec_all()
    def release_wait(restore, vt):
        lp, rs = U("L_rw"), U("L_rs")
        a("s_mov_b32 s79, 0")
        a(f"v_mov_b32 v{vt+1}, 0")
        a.label(lp)
        a("s_sleep 8")
        a(f"ds_read_b32 v{vt}, v{vt+1} offset:{C_REL}")
        a("s_waitcnt lgkmcnt(0)")
        a(f"v_readfirstlane_b32 s43, v{vt}")
        a("s_cmp_eq_u32 s43, 1")
        a("s_cbranch_scc1 L_fin")
        a("s_cmp_eq_u32 s43, 2")
        a(f"s_cbranch_scc1 {rs}")
        a(f"s_add_u32 s79, s79, 1")
        a(f"s_cmp_lt_u32 s79, {REL_N}")
        a(f"s_cbranch_scc1 {lp}")
        lds_op("ds_max_u32", C_REL, 2, vt)
        a.label(rs)
        restore()
        a("s_branch L_fin")
    def wait_until(ticks):
        lp = U("L_wu")
        a(f"s_add_u32 s32, s32, {ticks}")
        a.label(lp)
        a("s_sleep 2")
        a("s_memrealtime s[34:35]")
        a("s_waitcnt lgkmcnt(0)")
        a("s_sub_u32 s34, s34, s32")
        a("s_cmp_lt_i32 s34, 0")
        a(f"s_cbranch_scc1 {lp}")
    def perm_pair(Rb, Tb, m):
        for p in range(4):
            a(f"v_perm_b32 v{Tb+4*(2*p)+m}, v{Rb+4*(2*m+1)+p}, v{Rb+4*(2*m)+p}, s{S_SELLO}")
            a(f"v_perm_b32 v{Tb+4*(2*p+1)+m}, v{Rb+4*(2*m+1)+p}, v{Rb+4*(2*m)+p}, s{S_SELHI}")
    def transpose(Rb, Tb, ne=8):
        for m in range(ne // 2): perm_pair(Rb, Tb, m)
    def rowreduce(regs, op, rors=(8, 4, 2, 1)):
        for r in rors:
            for x in regs:
                a(f"{op}_dpp v{x}, v{x}, v{x} row_ror:{r} row_mask:0xf bank_mask:0xf")
    def xrow_reduce(regs, op, tmps):
        for sw in ("v_permlane16_swap_b32", "v_permlane32_swap_b32"):
            for x, t in zip(regs, tmps): a(f"v_mov_b32 v{t}, v{x}")
            for x, t in zip(regs, tmps): a(f"{sw} v{x}, v{t}")
            for x, t in zip(regs, tmps): a(f"{op} v{x}, v{x}, v{t}")
    def tags_ready():
        a(f"""
        s_waitcnt lgkmcnt(0)
        s_add_u32 s79, s78, 1
        s_mul_i32 s79, s79, 9
        s_mul_i32 s37, s79, 0x9E3779B1
        s_add_u32 s79, s79, s38
        s_mul_i32 s36, s79, 0x9E3779B1
        s_and_b32 s{TL}, s36, 0xff
        s_bfe_u32 s{TL+1}, s36, 0x80008
        s_bfe_u32 s{TL+2}, s36, 0x80010
        s_lshr_b32 s{TL+3}, s36, 24
        s_and_b32 s{TG}, s37, 0xff
        s_bfe_u32 s{TG+1}, s37, 0x80008
        s_bfe_u32 s{TG+2}, s37, 0x80010
        s_lshr_b32 s{TG+3}, s37, 24
        """)

    stamp(0)
    a("s_cmp_ge_u32 s2, 256")
    a("s_cbranch_scc1 L_end")
    if opts.get("perm") == 1:
        a("s_lshr_b32 s3, s2, 3"); a("s_lshl_b32 s2, s2, 5"); a("s_or_b32 s2, s2, s3"); a("s_and_b32 s2, s2, 255")
    if opts.get("perm") == 2:
        a("s_cmp_lt_u32 s2, 2"); a("s_cselect_b32 s3, 1, 0"); a("s_xor_b32 s2, s2, s3")
    a("""
    s_load_dwordx16 s[52:67], s[0:1], 0
    s_load_dwordx8 s[68:75], s[0:1], 64
    s_load_dwordx2 s[76:77], s[0:1], 96
    s_memrealtime s[32:33]
    s_getreg_b32 s38, hwreg(HW_REG_XCC_ID)
    v_lshrrev_b32 v1, 6, v0
    v_and_b32 v0, 63, v0
    v_readfirstlane_b32 s3, v1
    v_and_b32 v1, 15, v0
    v_lshrrev_b32 v2, 4, v0
    v_mov_b32 v3, 0xffffff00
    v_lshlrev_b32 v4, 4, v0
    s_and_b32 s38, s38, 7
    s_add_u32 s38, s38, 1
    s_and_b32 s30, s2, 7
    s_lshr_b32 s31, s2, 5
    s_and_b32 s83, s2, 1
    s_sub_u32 s29, 4, s83
    s_lshr_b32 s28, s30, 1
    s_mul_i32 s28, s28, 7
    s_lshl_b32 s83, s83, 2
    s_add_u32 s39, s28, s83
    s_lshl_b32 s28, s39, 3
    s_mul_i32 s83, s31, s29
    s_add_u32 s28, s28, s83
    s_lshl_b32 s28, s28, 3
    s_mov_b32 s80, 0x05040100
    s_mov_b32 s81, 0x07060302
    """)
    if stamps:
        for i in range(1, 8): a(f"s_mov_b64 s[{86+2*i}:{87+2*i}], 0")
    if opts.get("kearly"):
        a("s_cmp_lg_u32 s3, 3")
        a("s_cbranch_scc1 L_noinit")
        a(f"""
        v_mov_b32 v8, 0
        v_lshlrev_b32 v9, 2, v0
        ds_write_b32 v9, v8 offset:{L_CNT}
        s_waitcnt lgkmcnt(0)
        """)
        a.label("L_noinit")
        a("s_barrier")
    a("s_cmp_ge_u32 s3, 12")
    a("s_cbranch_scc1 L_cw")
    a("s_cmp_ge_u32 s3, 4")
    a("s_cbranch_scc1 L_attn")
    a("s_cmp_eq_u32 s3, 3")
    a("s_cbranch_scc1 L_h3")

    def ws_setup():
        a("s_load_dword s78, s[76:77], 0")
        mk_srd(SW, 76, 0x20000000)

    a("""
    v_and_b32 v5, 1, v1
    v_lshlrev_b32 v5, 10, v5
    v_bfe_u32 v6, v1, 1, 1
    v_lshl_add_u32 v5, v6, 6, v5
    v_lshl_add_u32 v5, v2, 4, v5
    v_lshrrev_b32 v6, 3, v1
    v_lshlrev_b32 v6, 2, v6
    v_add_u32 v6, v6, v2
    v_lshlrev_b32 v6, 3, v6
    v_and_b32 v7, 7, v1
    v_lshlrev_b32 v7, 4, v7
    s_mov_b32 s42, 0
    """)
    a("s_cmp_eq_u32 s3, 0")
    a("s_cbranch_scc0 L_h12")
    W0, T0, ACC, XA, PUB = 16, 80, 16, 112, 100
    def tile_loads(stride, nblk):
        for t in range(nblk):
            a(f"buffer_load_dwordx4 v[{XA+4*t}:{XA+4*t+3}], v5, {srd(SA)}, s83 offen offset:{128*t}")
        for t in range(nblk):
            for e in range(8):
                r = W0 + 4 * (8 * t + e)
                a(f"buffer_load_dwordx4 v[{r}:{r+3}], v8, {srd(SB)}, s82 offen nt")
                if not (t == nblk - 1 and e == 7):
                    a(f"s_add_u32 s82, s82, {stride if e < 7 else 57 * stride}")
    def tile_compute(nblk):
        for t in range(nblk):
            a(f"s_waitcnt vmcnt({8*(nblk-1-t)})")
            transpose(W0 + 32 * t, T0)
            for dd in range(8):
                c = f"v[{ACC+4*dd}:{ACC+4*dd+3}]" if t else "0"
                a(f"v_mfma_f32_16x16x32_bf16 v[{ACC+4*dd}:{ACC+4*dd+3}], v[{XA+4*t}:{XA+4*t+3}], v[{T0+4*dd}:{T0+4*dd+3}], {c}")
        tags_ready()
        for G in range(4):
            b, half = G >> 1, G & 1
            exec_rows(G)
            for m in range(4):
                d = ACC + 4 * (4 * half + m)
                a(f"v_add_f32_dpp v{PUB+m}, v{d+2+b}, v{d+b} row_ror:8 row_mask:0xf bank_mask:0xf")
        exec_all()
    def pub_store(T, mod):
        for m in range(4):
            a(f"v_and_or_b32 v{PUB+m}, v{PUB+m}, v3, s{T+m}")
        exec_set(0x00FF00FF, 0x00FF00FF)
        a(f"buffer_store_dwordx4 v[{PUB}:{PUB+3}], v{PUB+4}, {srd(SW)}, s41 offen {mod}")
        exec_all()
    def pub_restore():
        sk = U("L_nr")
        a("s_cmp_eq_u32 s40, 0")
        a(f"s_cbranch_scc1 {sk}")
        pub_store(TG, "sc1")
        a.label(sk)

    a("""
    v_lshlrev_b32 v8, 13, v6
    v_add_u32 v8, v8, v7
    s_bfe_u32 s84, s2, 0x20003
    s_lshl_b32 s85, s30, 3
    s_add_u32 s85, s85, s31
    s_lshl_b32 s82, s84, 20
    s_lshl_b32 s83, s85, 7
    s_add_u32 s82, s82, s83
    s_lshl_b32 s83, s84, 8
    s_waitcnt lgkmcnt(0)
    """)
    mk_srd(SA, 52, 2048)
    mk_srd(SB, 58, 4194304)
    tile_loads(8192, 2)
    if not opts.get("kearly"): a("s_barrier")
    ws_setup()
    a(f"""
    v_lshrrev_b32 v12, 1, v2
    v_lshlrev_b32 v12, 14, v12
    v_and_b32 v13, 1, v2
    v_lshl_add_u32 v12, v13, 4, v12
    v_lshl_add_u32 v{PUB+4}, v7, 1, v12
    s_lshl_b32 s41, s84, 15
    s_lshl_b32 s83, s85, 8
    s_add_u32 s41, s41, s83
    s_add_u32 s41, s41, {WS_QP}
    s_mov_b32 s40, 1
    """)
    tile_compute(2)
    a(f"v_lshl_add_u32 v{PUB+4}, v7, 1, v12")
    pub_store(TL, "")
    if opts.get("hint", False):
        a(f"""
        v_lshlrev_b32 v8, 7, v0
        v_mov_b32 v9, s36
        s_lshl_b32 s82, s30, 11
        s_lshr_b32 s83, s2, 3
        s_lshl_b32 s83, s83, 2
        s_add_u32 s82, s82, s83
        s_add_u32 s82, s82, {WS_FL}
        """)
        exec_set(0xFFFF, 0)
        a(f"buffer_store_dword v9, v8, {srd(SW)}, s82 offen")
        exec_all()
    stamp(1)
    a("s_mov_b32 s43, 0")
    a("s_branch L_qgather")

    a.label("L_h12")
    a("""
    s_movk_i32 s82, 3584
    v_mul_lo_u32 v8, v6, s82
    v_add_u32 v8, v8, v7
    s_bfe_u32 s84, s2, 0x30003
    s_lshr_b32 s43, s2, 6
    s_add_u32 s85, s39, s43
    s_mul_i32 s82, s84, 229376
    s_lshl_b32 s83, s85, 7
    s_add_u32 s82, s82, s83
    s_lshl_b32 s83, s84, 7
    s_mov_b32 s40, 0
    s_waitcnt lgkmcnt(0)
    """)
    mk_srd(SA, 52, 2048)
    a(f"""
    s_cmp_eq_u32 s3, 1
    s_cselect_b32 s{SB}, s64, s66
    s_cselect_b32 s{SB+1}, s65, s67
    s_and_b32 s{SB+1}, s{SB+1}, 0xffff
    s_mov_b32 s{SB+2}, 1835008
    s_mov_b32 s{SB+3}, 0x20000
    """)
    a("s_cmp_eq_u32 s3, 1")
    a("s_cbranch_scc1 L_h12a")
    mk_srd(SC, 70, 1024)
    a(f"""
    buffer_load_dwordx4 v[116:119], v4, {srd(SA)}, 0 offen
    buffer_load_dwordx4 v[120:123], v4, {srd(SA)}, 0 offen offset:1024
    buffer_load_dwordx4 v[124:127], v4, {srd(SC)}, 0 offen
    """)
    a.label("L_h12a")
    if opts.get("gu_late", False):
        a("s_barrier")
        ws_setup()
        lds_wait(C_K, 8, 10, sleep=1)
    a("s_cmp_ge_u32 s43, s29")
    a("s_cbranch_scc1 L_h12_skip")
    tile_loads(3584, 1)
    a.label("L_h12_skip")
    if opts.get("gu_late", False):
        lds_add(C_K, 10)
    else:
        if not opts.get("kearly"): a("s_barrier")
        ws_setup()
    a("s_cmp_ge_u32 s43, s29")
    a("s_cbranch_scc1 L_h12_none")
    a(f"""
    v_lshrrev_b32 v12, 1, v2
    v_mul_u32_u24 v12, 7168, v12
    v_and_b32 v13, 1, v2
    v_lshl_add_u32 v12, v13, 4, v12
    s_mul_i32 s41, s84, 14336
    s_lshl_b32 s83, s85, 8
    s_add_u32 s41, s41, s83
    s_sub_u32 s83, s3, 1
    s_lshl_b32 s83, s83, 17
    s_add_u32 s41, s41, s83
    s_add_u32 s41, s41, {WS_GP}
    s_mov_b32 s40, 1
    """)
    tile_compute(1)
    a(f"v_lshl_add_u32 v{PUB+4}, v7, 1, v12")
    pub_store(TL, "")
    stamp(1)
    a("s_branch L_h12_done")
    a.label("L_h12_none")
    a(f"v_mov_b32 v{PUB+4}, 0")
    a(f"s_mov_b32 s41, {WS_STAMP}")
    tags_ready()
    a.label("L_h12_done")
    a("s_cmp_eq_u32 s3, 2")
    a("s_cbranch_scc1 L_ffn")
    lds_add(C_Q, 8)
    a("s_branch L_hrel")

    a.label("L_qgather")
    a(f"""
    s_and_b32 s82, s2, 15
    s_lshl_b32 s82, s82, 11
    s_lshl_b32 s83, s43, 10
    s_add_u32 s82, s82, s83
    s_add_u32 s82, s82, {WS_QP}
    s_add_u32 s83, s82, 32768
    s_add_u32 s84, s82, 65536
    s_add_u32 s85, s82, 98304
    """)
    if opts.get("hint", False):
        wait_until(opts.get("hint0", 200))
        a(f"""
        s_lshl_b32 s44, s30, 11
        s_add_u32 s44, s44, {WS_FL}
        s_add_u32 s44, s76, s44
        s_addc_u32 s45, s77, 0
        s_mov_b32 s46, s36
        s_mov_b32 s47, s36
        s_mov_b32 s79, 0
        """)
        a.label("L_hint")
        a("s_load_dwordx16 s[52:67], s[44:45], 0")
        a("s_load_dwordx8 s[4:11], s[44:45], 64")
        a("s_load_dwordx8 s[86:93], s[44:45], 96" if not stamps else "s_load_dwordx4 s[12:15], s[44:45], 96")
        if stamps: a("s_load_dwordx4 s[48:51], s[44:45], 112")
        a(f"s_sleep {opts.get('hsleep', 5)}")
        a("s_add_u32 s44, s44, 128")
        a("s_addc_u32 s45, s45, 0")
        a("s_add_u32 s79, s79, 1")
        a("s_waitcnt lgkmcnt(0)")
        prs = list(range(52, 68, 2)) + list(range(4, 12, 2)) + (list(range(86, 94, 2)) if not stamps else [12, 14, 48, 50])
        for n, p in enumerate(prs):
            a(f"s_xor_b64 s[{p}:{p+1}], s[{p}:{p+1}], s[46:47]")
            if n: a(f"s_or_b64 s[52:53], s[52:53], s[{p}:{p+1}]")
        a("s_cbranch_scc0 L_hintok")
        a("s_cmp_lt_u32 s79, 16")
        a("s_cbranch_scc1 L_hint")
        a.label("L_hintok")
    else:
        wait_until(opts.get("qat", 330))
    qloads = [f"buffer_load_dwordx4 v[{16+4*ks}:{19+4*ks}], v4, {srd(SW)}, s{82+ks} offen sc1" for ks in range(4)]
    for l in qloads: a(l)
    lds_add(C_G, 8)
    poll(qloads, [16, 20, 24, 28], (8, 9, 10, 11, 12), on_timeout=pub_restore, slowflag=42, issued=True)
    for m in range(4):
        a(f"v_add_f32 v{16+m}, v{16+m}, v{20+m}")
        a(f"v_add_f32 v{24+m}, v{24+m}, v{28+m}")
    for m in range(4): a(f"v_add_f32 v{16+m}, v{16+m}, v{24+m}")
    a(f"""
    v_cvt_pk_bf16_f32 v8, v16, v17
    v_cvt_pk_bf16_f32 v9, v18, v19
    v_lshlrev_b32 v10, 3, v0
    s_lshl_b32 s82, s43, 9
    v_add_u32 v10, s82, v10
    ds_write_b64 v10, v[8:9] offset:{L_Q}
    s_waitcnt lgkmcnt(0)
    """)
    lds_add(C_Q, 8)
    stamp(2)
    a("s_cmp_eq_u32 s3, 3")
    a("s_cbranch_scc1 L_h3b")
    a.label("L_hrel")
    a("s_cmp_eq_u32 s42, 1")
    a("s_cbranch_scc1 L_fin")
    release_wait(pub_restore, 8)

    a.label("L_ffn")
    lds_add(C_Q, 8)
    a(f"""
    v_and_b32 v8, 7, v0
    v_mul_u32_u24 v8, 14336, v8
    v_lshrrev_b32 v9, 3, v0
    v_lshl_add_u32 v8, v9, 4, v8
    s_lshl_b32 s82, s28, 2
    s_add_u32 s82, s82, {WS_GP}
    s_add_u32 s83, s82, 7168
    s_add_u32 s84, s82, {WS_UP-WS_GP}
    s_add_u32 s85, s84, 7168
    s_waitcnt vmcnt(0)
    v_mov_b32 v14, 0
    v_mov_b32 v15, 0
    """)
    for m in range(4):
        a(f"v_dot2_f32_bf16 v14, v{116+m}, v{124+m}, v14")
        a(f"v_dot2_f32_bf16 v15, v{120+m}, v{124+m}, v15")
    a("s_nop 3")
    rowreduce([14, 15], "v_add_f32")
    xrow_reduce([14, 15], "v_add_f32", [10, 11])
    a("""
    v_mul_f32 v14, 0xbfb8aa3b, v14
    v_mul_f32 v15, 0xbfb8aa3b, v15
    v_exp_f32 v14, v14
    v_exp_f32 v15, v15
    v_add_f32 v14, 1.0, v14
    v_add_f32 v15, 1.0, v15
    v_rcp_f32 v14, v14
    v_rcp_f32 v15, v15
    """)
    for m in range(16): a(f"v_mov_b32 v{16+m}, 0")
    if opts.get("hint", False):
        lds_wait(C_G, 2, 10, sleep=2)
        a(f"s_sleep {opts.get('hdel', 12)}")
    else:
        wait_until(opts.get("hat", 400))
    a("s_cmp_eq_u32 s29, 4")
    a("s_cselect_b32 exec_hi, -1, 0xffff")
    poll([f"buffer_load_dwordx4 v[{16+4*x}:{19+4*x}], v8, {srd(SW)}, s{82+x} offen sc1" for x in range(4)],
         [16, 20, 24, 28], (9, 10, 11, 12, 13), on_timeout=pub_restore, slowflag=42)
    for ctl in ("quad_perm:[1,0,3,2]", "quad_perm:[2,3,0,1]", "row_half_mirror"):
        for m in range(16):
            a(f"v_add_f32_dpp v{16+m}, v{16+m}, v{16+m} {ctl} row_mask:0xf bank_mask:0xf")
    for m in range(8): a(f"v_mul_f32 v{32+m}, 0xbfb8aa3b, v{16+m}")
    for m in range(8): a(f"v_exp_f32 v{32+m}, v{32+m}")
    for m in range(8): a(f"v_add_f32 v{32+m}, 1.0, v{32+m}")
    for m in range(8): a(f"v_rcp_f32 v{32+m}, v{32+m}")
    for m in range(8): a(f"v_mul_f32 v{16+m}, v{16+m}, v{24+m}")
    for m in range(8): a(f"v_mul_f32 v{16+m}, v{16+m}, v{32+m}")
    a("v_sub_f32 v10, 1.0, v14")
    a("v_sub_f32 v11, 1.0, v15")
    for m in range(4): a(f"v_mul_f32 v{16+m}, v{16+m}, v10")
    for m in range(4): a(f"v_mul_f32 v{20+m}, v{20+m}, v11")
    a(f"""
    v_lshrrev_b32 v9, 3, v0
    v_lshlrev_b32 v9, 4, v9
    v_mov_b32 v12, 0
    """)
    exec_set(0x01010101, 0x01010101)
    a(f"ds_write_b128 v9, v[16:19] offset:{L_H}")
    a(f"ds_write_b128 v9, v[20:23] offset:{L_H+128}")
    exec_set(1, 0)
    a(f"ds_write_b64 v12, v[14:15] offset:{L_G}")
    exec_all()
    a("s_waitcnt lgkmcnt(0)")
    lds_add(C_H, 8)
    stamp(2)
    a("s_branch L_hrel")

    a.label("L_h3")
    if not opts.get("kearly"):
        a(f"""
        v_lshlrev_b32 v9, 2, v0
        v_mov_b32 v8, 0
        ds_write_b32 v9, v8 offset:{L_CNT}
        s_waitcnt lgkmcnt(0)
        s_barrier
        """)
    else:
        a("s_waitcnt lgkmcnt(0)")
    ws_setup()
    tags_ready()
    a(f"""
    s_mov_b32 s43, 1
    s_mov_b32 s40, 0
    s_mov_b32 s42, 0
    v_mov_b32 v{PUB+4}, 0
    s_mov_b32 s41, {WS_STAMP}
    s_branch L_qgather
    """)
    a.label("L_h3b")
    a("s_cmp_ge_u32 s2, 32")
    a("s_cbranch_scc1 L_fin")
    mk_srd(SC, 72, 2048)
    a(f"""
    v_lshrrev_b32 v8, 3, v0
    v_lshlrev_b32 v8, 10, v8
    v_and_b32 v9, 7, v0
    v_lshl_add_u32 v48, v9, 4, v8
    s_lshr_b32 s82, s2, 3
    s_lshl_b32 s82, s82, 16
    s_lshl_b32 s83, s30, 7
    s_add_u32 s82, s82, s83
    s_add_u32 s82, s82, {WS_YP}
    v_lshlrev_b32 v8, 3, v0
    s_bfe_u32 s84, s2, 0x10002
    s_lshl_b32 s84, s84, 10
    s_lshr_b32 s83, s2, 3
    s_lshl_b32 s83, s83, 8
    s_add_u32 s84, s84, s83
    s_and_b32 s83, s2, 3
    s_lshl_b32 s83, s83, 6
    s_add_u32 s84, s84, s83
    s_add_u32 s85, s78, 1
    v_mov_b32 v5, s85
    v_mov_b32 v6, 0
    """)
    for i in range(1, 8): a(f"v_add_u32 v{48+i}, {8192*i}, v48")
    lds_wait(C_Y if opts.get("ywait", True) else C_O, 4 if opts.get("ywait", True) else 8, 10, sleep=2)
    stamp(4)
    poll([f"buffer_load_dwordx4 v[{16+4*i}:{19+4*i}], v{48+i}, {srd(SW)}, s82 offen sc1" for i in range(8)],
         [16 + 4 * i for i in range(8)], (9, 10, 11), T=TG)
    stamp(5)
    for st in (4, 2, 1):
        for i in range(st):
            for m in range(4): a(f"v_add_f32 v{16+4*i+m}, v{16+4*i+m}, v{16+4*(i+st)+m}")
    rowreduce([16, 17, 18, 19], "v_add_f32", (8,))
    xrow_reduce([16, 17, 18, 19], "v_add_f32", [20, 21, 22, 23])
    a("v_cvt_pk_bf16_f32 v16, v16, v17")
    a("v_cvt_pk_bf16_f32 v17, v18, v19")
    exec_set(0xFF, 0)
    a(f"buffer_store_dwordx2 v[16:17], v8, {srd(SC)}, s84 offen")
    a("s_cmp_lg_u32 s2, 0")
    a("s_cbranch_scc1 L_noepoch")
    exec_set(1, 0)
    a(f"buffer_store_dword v5, v6, {srd(SW)}, 0 offen sc1")
    a.label("L_noepoch")
    exec_all()
    if opts.get("padto"):
        a(f"s_sub_u32 s32, s32, {opts.get('qat', 330)}")
        wait_until(opts["padto"])
    stamp(7)
    a("s_branch L_fin")

    a.label("L_cw")
    WC, TC, D, PL, AO = 16, 40, 72, 104, 112
    a(f"""
    s_sub_u32 s84, s3, 12
    v_lshlrev_b32 v8, 15, v2
    v_lshl_add_u32 v8, v1, 4, v8
    v_lshlrev_b32 v9, 10, v2
    v_lshl_add_u32 v9, v1, 4, v9
    s_lshl_b32 s82, s30, 2
    s_add_u32 s82, s82, s84
    s_lshl_b32 s82, s82, 17
    s_lshl_b32 s83, s31, 10
    s_add_u32 s82, s82, s83
    s_bfe_u32 s85, s2, 0x20003
    s_lshl_b32 s85, s85, 8
    s_add_u32 s82, s82, s85
    s_lshl_b32 s79, s84, 3
    s_add_u32 s83, s28, s79
    s_lshl_b32 s83, s83, 10
    s_add_u32 s83, s83, s85
    s_waitcnt lgkmcnt(0)
    """)
    mk_srd(SA, 60, 4194304)
    mk_srd(SB, 68, 1835008)
    if not opts.get("kearly"): a("s_barrier")
    ws_setup()
    tags_ready()
    lds_add(C_Q, 10)
    lds_wait(C_V, 8, 10, sleep=4)
    for e in range(4):
        a(f"buffer_load_dwordx4 v[{WC+4*e}:{WC+4*e+3}], v8, {srd(SA)}, s82 offen nt")
        if e < 3: a("s_add_u32 s82, s82, 8192")
    a(f"buffer_load_dwordx4 v[{WC+16}:{WC+19}], v9, {srd(SB)}, s83 offen nt")
    a("s_add_u32 s83, s83, 4096")
    a(f"buffer_load_dwordx4 v[{WC+20}:{WC+23}], v9, {srd(SB)}, s83 offen nt")
    stamp(1)
    a(f"""
    v_and_b32 v8, 1, v1
    v_lshlrev_b32 v8, 7, v8
    v_lshrrev_b32 v9, 1, v1
    v_add_u32 v8, v8, v9
    v_lshlrev_b32 v8, 11, v8
    v_lshl_add_u32 v9, v2, 4, v8
    s_lshl_b32 s82, s30, 15
    s_lshl_b32 s83, s31, 8
    s_add_u32 s82, s82, s83
    s_lshl_b32 s79, s84, 6
    s_add_u32 s82, s82, s79
    s_add_u32 s82, s82, {WS_OP}
    s_add_u32 s83, s82, 16384
    v_lshrrev_b32 v12, 1, v2
    v_lshlrev_b32 v12, 9, v12
    v_and_b32 v13, 1, v2
    v_lshl_add_u32 v12, v13, 4, v12
    v_lshl_add_u32 v12, v1, 5, v12
    s_lshl_b32 s79, s84, 10
    v_add_u32 v13, s79, v12
    s_bfe_u32 s40, s2, 0x20003
    s_lshl_b32 s40, s40, 6
    s_lshl_b32 s79, s30, 3
    s_add_u32 s40, s40, s79
    s_add_u32 s40, s40, s31
    s_lshl_b32 s40, s40, 10
    s_add_u32 s40, s40, {WS_YP}
    s_mov_b32 s42, 0
    """)
    for dd in range(8): a(f"v_mov_b32 v{TC+4*dd+3}, 0")
    lds_wait(C_H, 1, 10, sleep=4)
    a(f"""
    v_and_b32 v8, 1, v1
    v_lshlrev_b32 v14, 2, v8
    v_lshlrev_b32 v8, 7, v8
    v_lshl_add_u32 v8, v2, 2, v8
    s_lshl_b32 s79, s84, 5
    v_add_u32 v8, s79, v8
    ds_read_b32 v10, v8 offset:{L_H}
    ds_read_b32 v11, v8 offset:{L_H+16}
    ds_read_b32 v118, v14 offset:{L_G}
    v_lshlrev_b32 v8, 3, v2
    s_waitcnt lgkmcnt(0)
    v_cvt_pk_bf16_f32 v{AO+2}, v10, v11
    v_mov_b32 v{AO+3}, 0
    """)
    oloads = [f"buffer_load_dwordx4 v[{PL}:{PL+3}], v9, {srd(SW)}, s82 offen sc1",
              f"buffer_load_dwordx4 v[{PL+4}:{PL+7}], v9, {srd(SW)}, s83 offen sc1"]
    a("s_waitcnt vmcnt(0)")
    stamp(2)
    for l in oloads: a(l)
    transpose(WC, TC, 6)
    poll(oloads, [PL, PL + 4], (5, 6, 7, 10, 11), on_timeout=lambda: None, issued=True, slowflag=42)
    stamp(3)
    for h, x in ((0, 116), (4, 117)):
        a(f"v_bfe_u32 v{x}, v{PL+h}, 8, 2")
        a(f"v_bfe_u32 v5, v{PL+h+1}, 8, 2")
        a(f"v_bfe_u32 v6, v{PL+h+2}, 8, 2")
        a(f"v_bfe_u32 v7, v{PL+h+3}, 8, 2")
        a(f"v_lshl_or_b32 v{x}, v5, 2, v{x}")
        a(f"v_lshl_or_b32 v6, v7, 2, v6")
        a(f"v_lshl_or_b32 v{x}, v6, 4, v{x}")
        a(f"v_lshlrev_b32 v{x}, v8, v{x}")
    xrow_reduce([116, 117], "v_or_b32", [5, 6])
    a("v_max_f32 v5, v116, v117")
    rowreduce([5], "v_max_f32", (8, 4, 2))
    a(f"""
    v_sub_f32 v116, v116, v5
    v_sub_f32 v117, v117, v5
    v_exp_f32 v116, v116
    v_exp_f32 v117, v117
    v_add_f32 v6, v116, v117
    """)
    for m in range(4): a(f"v_mul_f32 v{PL+m}, v116, v{PL+m}")
    for m in range(4): a(f"v_fmac_f32 v{PL+m}, v117, v{PL+4+m}")
    rowreduce([6, PL, PL + 1, PL + 2, PL + 3], "v_add_f32", (8, 4, 2))
    a("v_rcp_f32 v6, v6")
    a("v_mul_f32 v6, v6, v118")
    for m in range(4): a(f"v_mul_f32 v{PL+m}, v6, v{PL+m}")
    a(f"v_cvt_pk_bf16_f32 v{AO}, v{PL}, v{PL+1}")
    a(f"v_cvt_pk_bf16_f32 v{AO+1}, v{PL+2}, v{PL+3}")
    stamp(4)
    for dd in range(8):
        a(f"v_mfma_f32_16x16x32_bf16 v[{D+4*dd}:{D+4*dd+3}], v[{AO}:{AO+3}], v[{TC+4*dd}:{TC+4*dd+3}], 0")
    for G in (0, 2, 1, 3):
        b, half = G >> 1, G & 1
        exec_rows(G)
        for m in range(4):
            a(f"v_mov_b32 v{16+m}, v{D+4*(4*half+m)+b}")
    exec_all()
    a(f"ds_write_b128 v13, v[16:19] offset:{L_Y}")
    a("s_waitcnt lgkmcnt(0)")
    lds_add_rtn(C_Y, 5)
    stamp(5)
    a("s_cmp_lg_u32 s79, 3")
    a("s_cbranch_scc1 L_crel")
    for x in range(4):
        a(f"ds_read_b128 v[{20+4*x}:{23+4*x}], v12 offset:{L_Y+1024*x}")
    a("s_waitcnt lgkmcnt(0)")
    for m in range(4):
        a(f"v_add_f32 v{20+m}, v{20+m}, v{24+m}")
        a(f"v_add_f32 v{28+m}, v{28+m}, v{32+m}")
    for m in range(4): a(f"v_add_f32 v{20+m}, v{20+m}, v{28+m}")
    for m in range(4): a(f"v_and_or_b32 v{20+m}, v{20+m}, v3, s{TG+m}")
    a(f"buffer_store_dwordx4 v[20:23], v12, {srd(SW)}, s40 offen sc1")
    stamp(6)
    a.label("L_crel")
    a("s_cmp_eq_u32 s42, 1")
    a("s_cbranch_scc1 L_fin")
    lds_op("ds_max_u32", C_REL, 1, 5)
    a("s_branch L_fin")

    a.label("L_attn")
    KR, VR, QB, SR, PR, FAC = 16, 48, 80, 96, 104, 108
    a("""
    s_sub_u32 s84, s3, 4
    s_and_b32 s82, s2, 15
    s_lshr_b32 s83, s2, 4
    s_lshl_b32 s85, s82, 4
    s_add_u32 s85, s85, s83
    s_lshl_b32 s82, s82, 23
    s_add_u32 s82, s82, 0x700000
    s_lshl_b32 s83, s83, 16
    s_add_u32 s82, s82, s83
    s_lshl_b32 s83, s84, 13
    s_add_u32 s82, s82, s83
    s_add_u32 s83, s82, 4096
    v_lshlrev_b32 v5, 8, v1
    v_lshl_add_u32 v5, v2, 4, v5
    v_lshlrev_b32 v6, 10, v2
    v_lshl_add_u32 v6, v1, 4, v6
    s_waitcnt lgkmcnt(0)
    """)
    mk_srd(SA, 54, 134217728)
    mk_srd(SB, 56, 134217728)
    if not opts.get("kearly"): a("s_barrier")
    for T in range(2):
        for jj in range(4):
            r = KR + 4 * (4 * T + jj)
            a(f"buffer_load_dwordx4 v[{r}:{r+3}], v5, {srd(SA)}, s{82+T} offen offset:{64*jj} nt")
    lds_add(C_K, 8)
    ws_setup()
    lds_wait(C_K, 10 if opts.get("gu_late", False) else 8, 8, sleep=1)
    if opts.get("vgate", 8) < 8:
        a(f"s_cmp_lt_u32 s84, {opts['vgate']}")
        a("s_cbranch_scc1 L_vgo")
        lds_wait(C_G, 2, 8, sleep=1)
        a.label("L_vgo")
    for e in range(8):
        r = VR + 4 * e
        a(f"buffer_load_dwordx4 v[{r}:{r+3}], v6, {srd(SB)}, s{82+(e>>2)} offen offset:{256*(e&3)} nt")
    lds_add(C_V, 8)
    stamp(1)
    tags_ready()
    a(f"""
    v_and_b32 v6, 3, v1
    v_lshlrev_b32 v6, 8, v6
    v_lshl_add_u32 v6, v2, 4, v6
    s_mov_b32 s42, 0
    v_lshlrev_b32 v13, 6, v1
    v_lshl_add_u32 v13, v2, 4, v13
    s_lshl_b32 s79, s84, 11
    v_add_u32 v13, s79, v13
    v_lshlrev_b32 v5, 2, v0
    s_lshl_b32 s79, s84, 8
    v_add_u32 v5, s79, v5
    v_mov_b32 v7, 0xfffffc00
    s_lshl_b32 s41, s85, 11
    s_add_u32 s41, s41, {WS_OP}
    v_and_b32 v14, 3, v0
    v_lshlrev_b32 v14, 3, v14
    v_lshrrev_b32 v15, v14, s37
    v_lshrrev_b32 v14, v14, s36
    v_and_b32 v14, 0xff, v14
    v_and_b32 v15, 0xff, v15
    """)
    lds_wait(C_Q, 8, 8, sleep=2)
    stamp(2)
    for jj in range(4):
        a(f"ds_read_b128 v[{QB+4*jj}:{QB+4*jj+3}], v6 offset:{L_Q+64*jj}")
    a("s_waitcnt vmcnt(8) lgkmcnt(0)")
    stamp(3)
    for jj in range(4):
        for T in range(2):
            c = f"v[{SR+4*T}:{SR+4*T+3}]" if jj else "0"
            r = KR + 4 * (4 * T + jj)
            a(f"v_mfma_f32_16x16x32_bf16 v[{SR+4*T}:{SR+4*T+3}], v[{r}:{r+3}], v[{QB+4*jj}:{QB+4*jj+3}], {c}")
    a("s_mov_b32 s79, 0x3e0293ee")
    for x in range(8): a(f"v_mul_f32 v{SR+x}, s79, v{SR+x}")
    a(f"v_max3_f32 v8, v{SR}, v{SR+1}, v{SR+2}")
    a(f"v_max3_f32 v8, v8, v{SR+3}, v{SR+4}")
    a(f"v_max3_f32 v8, v8, v{SR+5}, v{SR+6}")
    a(f"v_max_f32 v8, v8, v{SR+7}")
    xrow_reduce([8], "v_max_f32", [10])
    for x in range(8): a(f"v_sub_f32 v{SR+x}, v{SR+x}, v8")
    for x in range(8): a(f"v_exp_f32 v{SR+x}, v{SR+x}")
    a(f"v_add_f32 v9, v{SR}, v{SR+1}")
    for x in range(2, 8): a(f"v_add_f32 v9, v9, v{SR+x}")
    for x in range(4): a(f"v_cvt_pk_bf16_f32 v{PR+x}, v{SR+2*x}, v{SR+2*x+1}")
    xrow_reduce([9], "v_add_f32", [10])
    a(f"""
    v_lshlrev_b32 v10, 3, v0
    s_lshl_b32 s79, s84, 5
    v_add_u32 v10, s79, v10
    """)
    exec_set(0xF, 0)
    a(f"ds_write_b64 v10, v[8:9] offset:{L_ML}")
    exec_all()
    a("s_waitcnt lgkmcnt(0)")
    lds_add(C_ML, 10)
    def factors():
        a("v_lshlrev_b32 v8, 3, v2")
        for x in range(8):
            a(f"ds_read_b64 v[{QB+2*x}:{QB+2*x+1}], v8 offset:{L_ML+32*x}")
        a("s_waitcnt lgkmcnt(0)")
        a(f"v_max3_f32 v9, v{QB}, v{QB+2}, v{QB+4}")
        a(f"v_max3_f32 v9, v9, v{QB+6}, v{QB+8}")
        a(f"v_max3_f32 v9, v9, v{QB+10}, v{QB+12}")
        a(f"v_max_f32 v9, v9, v{QB+14}")
        for x in range(8): a(f"v_sub_f32 v{FAC+x}, v{QB+2*x}, v9")
        for x in range(8): a(f"v_exp_f32 v{FAC+x}, v{FAC+x}")
        a(f"v_mul_f32 v117, v{FAC}, v{QB+1}")
        for x in range(1, 8): a(f"v_fmac_f32 v117, v{FAC+x}, v{QB+2*x+1}")
        a("""
        v_log_f32 v116, v117
        v_rcp_f32 v117, v117
        v_add_f32 v116, v116, v9
        v_lshlrev_b32 v8, 1, v1
        v_lshrrev_b32 v116, v8, v116
        v_and_b32 v116, 3, v116
        v_lshl_or_b32 v116, v116, 8, v14
        s_mov_b32 s42, 1
        """)
        for x in range(8): a(f"v_mul_f32 v{FAC+x}, v{FAC+x}, v117")
    lds_wait(C_ML, 8, 10, sleep=1)
    factors()
    a("v_mov_b32 v10, 0")
    a("v_mov_b32 v11, 1")
    for m in range(4):
        a(f"s_waitcnt vmcnt({6-2*m})")
        if m == 3: stamp(4)
        perm_pair(VR, KR, m)
    exec_set(0x000F000F, 0x000F000F)
    for dd in range(8):
        a(f"v_mfma_f32_16x16x32_bf16 v[{VR+4*dd}:{VR+4*dd+3}], v[{KR+4*dd}:{KR+4*dd+3}], v[{PR}:{PR+3}], 0")
    for dd in range(8):
        a(f"ds_write_b128 v13, v[{VR+4*dd}:{VR+4*dd+3}] offset:{L_O+256*dd}")
    exec_set(1, 0)
    a(f"ds_add_u32 v10, v11 offset:{C_O}")
    exec_all()
    stamp(5)
    lds_wait(C_O, 8, 8)
    stamp(6)
    for x in range(8):
        a(f"ds_read_b32 v{QB+x}, v5 offset:{L_O+2048*x}")
    for x in range(8):
        a(f"s_waitcnt lgkmcnt({7-x})" if not stamps else "s_waitcnt lgkmcnt(0)")
        if x == 0: a(f"v_mul_f32 v12, v{FAC}, v{QB}")
        else: a(f"v_fmac_f32 v12, v{FAC+x}, v{QB+x}")
    a("v_and_or_b32 v12, v12, v7, v116")
    a(f"buffer_store_dword v12, v5, {srd(SW)}, s41 offen")
    stamp(7)
    def o_restore():
        a("v_and_or_b32 v12, v12, v3, v15")
        a(f"buffer_store_dword v12, v5, {srd(SW)}, s41 offen sc1")
    release_wait(o_restore, 10)

    for c in cold: c()

    a.label("L_fin")
    if stamps:
        a(f"""
        s_waitcnt lgkmcnt(0) vmcnt(0)
        s_lshl_b32 s82, s2, 4
        s_add_u32 s82, s82, s3
        s_lshl_b32 s82, s82, 6
        s_add_u32 s82, s82, {WS_STAMP}
        v_mov_b32 v4, 0
        """)
        for i in range(16): a(f"v_mov_b32 v{16+i}, s{86+i}")
        exec_set(1, 0)
        for i in range(4):
            a(f"buffer_store_dwordx4 v[{16+4*i}:{19+4*i}], v4, {srd(SW)}, s82 offen offset:{16*i}")
    a.label("L_end")
    a("s_endpgm")
    R('.section .rodata,"a"')
    R(".p2align 6")
    R(f".amdhsa_kernel {NAME}_kernel")
    R("  .amdhsa_next_free_vgpr 128")
    R("  .amdhsa_next_free_sgpr 102")
    R("  .amdhsa_accum_offset 128")
    R("  .amdhsa_group_segment_fixed_size 0")
    R("  .amdhsa_kernarg_size 104")
    R("  .amdhsa_user_sgpr_count 2")
    R("  .amdhsa_user_sgpr_kernarg_segment_ptr 1")
    R("  .amdhsa_system_sgpr_workgroup_id_x 1")
    R(".end_amdhsa_kernel")
    return a.text()

if __name__ == "__main__":
    variants = {
        "z0": dict(),
        "pad40": dict(padto=4000),
        "pad30": dict(padto=3000),
        "pad16": dict(padto=1600),
        "pad13": dict(padto=1300),
    }
    for n, o in variants.items():
        open(f"work/{n}.s", "w").write(gen(False, o))
        open(f"work/{n}s.s", "w").write(gen(True, o))
```

```python
import sys
from asmlib import Asm
NAME = "gated_mix__sliding_block_cached__swiglu_ffn__decode"

WS_FL = 0x10000
WS_QP = 0x20000
WS_GP = 0x40000
WS_UP = 0x60000
WS_YP = 0x80000
WS_OP = 0x100000
WS_STAMP = 0x10000000
L_Q = 0
L_ML = 1024
L_CNT = 1280
C_Q, C_ML, C_O, C_H, C_Y, C_K, C_V, C_REL, C_G = [L_CNT + 4 * i for i in range(9)]
L_H = 1408
L_G = 1664
L_Y = 2048
L_O = 6144
LDS_BYTES = L_O + 8 * 2048
SPIN_MAX = 60000
NWAVES = 16
SA, SB, SC, SW = 4, 8, 12, 16
TL, TG = 20, 24
S_F0, S_NU, S_X8, S_DD0 = 28, 29, 30, 31
S_SELLO, S_SELHI = 80, 81
def srd(b): return f"s[{b}:{b+3}]"

def gen(stamps=False, opts=None):
    opts = opts or {}
    FAST_N = opts.get("fast_n", 150)
    REL_N = opts.get("rel_n", 120)
    a = Asm()
    R = a.raw
    uid = [0]
    def U(p):
        uid[0] += 1
        return f"{p}_{uid[0]}"
    R(f"; @launch grid=(256,1,1) block=({64*NWAVES},1,1) lds={LDS_BYTES}")
    R('.amdgcn_target "amdgcn-amd-amdhsa--gfx950"')
    R(".text")
    R(f".globl {NAME}_kernel")
    R(".p2align 8")
    R(f".type {NAME}_kernel,@function")
    R(f"{NAME}_kernel:")
    def stamp(i):
        if stamps: a(f"s_memrealtime s[{86+2*i}:{87+2*i}]")
    def mk_srd(b, p, size):
        a(f"s_mov_b32 s{b}, s{p}")
        a(f"s_and_b32 s{b+1}, s{p+1}, 0xffff")
        a(f"s_mov_b32 s{b+2}, {size}")
        a(f"s_mov_b32 s{b+3}, 0x20000")
    def exec_set(lo, hi):
        a(f"s_mov_b32 exec_lo, {lo:#x}")
        a(f"s_mov_b32 exec_hi, {hi:#x}")
    def exec_rows(G):
        exec_set((0xFFFF << (16 * G)) & 0xFFFFFFFF if G < 2 else 0, (0xFFFF << (16 * (G - 2))) & 0xFFFFFFFF if G >= 2 else 0)
    def exec_all(): a("s_mov_b64 exec, -1")
    def tagcheck(regs, acc, t0, t1, T):
        first = True
        for q in regs:
            for h in range(2):
                a(f"v_xor_b32 v{t0}, s{T+2*h}, v{q+2*h}")
                a(f"v_xor_b32 v{t1}, s{T+2*h+1}, v{q+2*h+1}")
                if first:
                    a(f"v_or_b32 v{acc}, v{t0}, v{t1}"); first = False
                else:
                    a(f"v_or3_b32 v{acc}, v{acc}, v{t0}, v{t1}")
        a(f"v_and_b32 v{acc}, 0xff, v{acc}")
        a(f"v_cmp_ne_u32 vcc, 0, v{acc}")
    def tagcheck2(regs, acc, t0, t1, t2, t3):
        a(f"v_mov_b32 v{acc}, 0")
        for q in regs:
            for T, x in ((TL, t2), (TG, t3)):
                a(f"v_xor_b32 v{t0}, s{T}, v{q}")
                a(f"v_xor_b32 v{t1}, s{T+1}, v{q+1}")
                a(f"v_or_b32 v{x}, v{t0}, v{t1}")
                a(f"v_xor_b32 v{t0}, s{T+2}, v{q+2}")
                a(f"v_xor_b32 v{t1}, s{T+3}, v{q+3}")
                a(f"v_or3_b32 v{x}, v{x}, v{t0}, v{t1}")
                a(f"v_and_b32 v{x}, 0xff, v{x}")
            a(f"v_min_u32 v{t2}, v{t2}, v{t3}")
            a(f"v_or_b32 v{acc}, v{acc}, v{t2}")
        a(f"v_cmp_ne_u32 vcc, 0, v{acc}")
    def lds_op(op, off, val, vt):
        a(f"v_mov_b32 v{vt}, 0")
        a(f"v_mov_b32 v{vt+1}, {val}")
        a("s_mov_b64 s[46:47], exec")
        exec_set(1, 0)
        a(f"{op} v{vt}, v{vt+1} offset:{off}")
        a("s_mov_b64 exec, s[46:47]")
    def lds_add(off, vt): lds_op("ds_add_u32", off, 1, vt)
    def lds_add_rtn(off, vt):
        a(f"v_mov_b32 v{vt}, 0")
        a(f"v_mov_b32 v{vt+1}, 1")
        exec_set(1, 0)
        a(f"ds_add_rtn_u32 v{vt+1}, v{vt}, v{vt+1} offset:{off}")
        a("s_waitcnt lgkmcnt(0)")
        a(f"v_readfirstlane_b32 s79, v{vt+1}")
        exec_all()
    def lds_wait(off, val, vt, sleep=0):
        lp, ok = U("L_lw"), U("L_lok")
        a("s_mov_b32 s79, 0")
        a(f"v_mov_b32 v{vt+1}, 0")
        a.label(lp)
        a(f"ds_read_b32 v{vt}, v{vt+1} offset:{off}")
        a("s_waitcnt lgkmcnt(0)")
        a(f"v_cmp_gt_u32 vcc, {val}, v{vt}")
        a(f"s_cbranch_vccz {ok}")
        if sleep: a(f"s_sleep {sleep}")
        a(f"s_add_u32 s79, s79, 1")
        a(f"s_cmp_lt_u32 s79, {SPIN_MAX*16}")
        a(f"s_cbranch_scc1 {lp}")
        a.label(ok)
    cold = []
    def poll(loads, regs, tmps, T=TL, on_timeout=None, issued=False, between=None, slowflag=None):
        lp, ok, wt = U("L_poll"), U("L_pok"), U("L_pwt")
        a("s_mov_b32 s79, 0")
        if issued: a(f"s_branch {wt}")
        a.label(lp)
        for l in loads: a(l)
        if issued: a.label(wt)
        a("s_waitcnt vmcnt(0)")
        tagcheck(regs, tmps[0], tmps[1], tmps[2], T)
        a(f"s_cbranch_vccz {ok}")
        a("s_mov_b64 exec, vcc")
        a(f"s_add_u32 s79, s79, 1")
        a(f"s_cmp_lt_u32 s79, {FAST_N if on_timeout else SPIN_MAX}")
        a(f"s_cbranch_scc1 {lp}")
        if on_timeout:
            sl = U("L_slow")
            a(f"s_branch {sl}")
            def slow():
                a.label(sl)
                a("s_mov_b64 s[44:45], exec")
                exec_all()
                lds_op("ds_max_u32", C_REL, 2, tmps[0])
                on_timeout()
                if slowflag: a(f"s_mov_b32 s{slowflag}, 1")
                a("s_mov_b64 exec, s[44:45]")
                a("s_mov_b32 s79, 0")
                lp2 = U("L_sp")
                a.label(lp2)
                for l in loads: a(l)
                a("s_waitcnt vmcnt(0)")
                tagcheck2(regs, *tmps)
                a(f"s_cbranch_vccz {ok}")
                a("s_mov_b64 exec, vcc")
                a("s_sleep 4")
                a(f"s_add_u32 s79, s79, 1")
                a(f"s_cmp_lt_u32 s79, {SPIN_MAX}")
                a(f"s_cbranch_scc1 {lp2}")
                a(f"s_branch {ok}")
            cold.append(slow)
        a.label(ok)
        exec_all()
    def release_wait(restore, vt):
        lp, rs = U("L_rw"), U("L_rs")
        a("s_mov_b32 s79, 0")
        a(f"v_mov_b32 v{vt+1}, 0")
        a.label(lp)
        a("s_sleep 8")
        a(f"ds_read_b32 v{vt}, v{vt+1} offset:{C_REL}")
        a("s_waitcnt lgkmcnt(0)")
        a(f"v_readfirstlane_b32 s43, v{vt}")
        a("s_cmp_eq_u32 s43, 1")
        a("s_cbranch_scc1 L_fin")
        a("s_cmp_eq_u32 s43, 2")
        a(f"s_cbranch_scc1 {rs}")
        a(f"s_add_u32 s79, s79, 1")
        a(f"s_cmp_lt_u32 s79, {REL_N}")
        a(f"s_cbranch_scc1 {lp}")
        lds_op("ds_max_u32", C_REL, 2, vt)
        a.label(rs)
        restore()
        a("s_branch L_fin")
    def wait_until(ticks):
        lp = U("L_wu")
        a(f"s_add_u32 s32, s32, {ticks}")
        a.label(lp)
        a("s_sleep 2")
        a("s_memrealtime s[34:35]")
        a("s_waitcnt lgkmcnt(0)")
        a("s_sub_u32 s34, s34, s32")
        a("s_cmp_lt_i32 s34, 0")
        a(f"s_cbranch_scc1 {lp}")
    def perm_pair(Rb, Tb, m):
        for p in range(4):
            a(f"v_perm_b32 v{Tb+4*(2*p)+m}, v{Rb+4*(2*m+1)+p}, v{Rb+4*(2*m)+p}, s{S_SELLO}")
            a(f"v_perm_b32 v{Tb+4*(2*p+1)+m}, v{Rb+4*(2*m+1)+p}, v{Rb+4*(2*m)+p}, s{S_SELHI}")
    def transpose(Rb, Tb, ne=8):
        for m in range(ne // 2): perm_pair(Rb, Tb, m)
    def rowreduce(regs, op, rors=(8, 4, 2, 1)):
        for r in rors:
            for x in regs:
                a(f"{op}_dpp v{x}, v{x}, v{x} row_ror:{r} row_mask:0xf bank_mask:0xf")
    def xrow_reduce(regs, op, tmps):
        for sw in ("v_permlane16_swap_b32", "v_permlane32_swap_b32"):
            for x, t in zip(regs, tmps): a(f"v_mov_b32 v{t}, v{x}")
            for x, t in zip(regs, tmps): a(f"{sw} v{x}, v{t}")
            for x, t in zip(regs, tmps): a(f"{op} v{x}, v{x}, v{t}")
    def tags_ready():
        a(f"""
        s_waitcnt lgkmcnt(0)
        s_add_u32 s79, s78, 1
        s_mul_i32 s79, s79, 9
        s_mul_i32 s37, s79, 0x9E3779B1
        s_add_u32 s79, s79, s38
        s_mul_i32 s36, s79, 0x9E3779B1
        s_and_b32 s{TL}, s36, 0xff
        s_bfe_u32 s{TL+1}, s36, 0x80008
        s_bfe_u32 s{TL+2}, s36, 0x80010
        s_lshr_b32 s{TL+3}, s36, 24
        s_and_b32 s{TG}, s37, 0xff
        s_bfe_u32 s{TG+1}, s37, 0x80008
        s_bfe_u32 s{TG+2}, s37, 0x80010
        s_lshr_b32 s{TG+3}, s37, 24
        """)

    stamp(0)
    a("s_cmp_ge_u32 s2, 256")
    a("s_cbranch_scc1 L_end")
    if opts.get("perm") == 1:
        a("s_lshr_b32 s3, s2, 3"); a("s_lshl_b32 s2, s2, 5"); a("s_or_b32 s2, s2, s3"); a("s_and_b32 s2, s2, 255")
    if opts.get("perm") == 2:
        a("s_cmp_lt_u32 s2, 2"); a("s_cselect_b32 s3, 1, 0"); a("s_xor_b32 s2, s2, s3")
    a("""
    s_load_dwordx16 s[52:67], s[0:1], 0
    s_load_dwordx8 s[68:75], s[0:1], 64
    s_load_dwordx2 s[76:77], s[0:1], 96
    s_getreg_b32 s38, hwreg(HW_REG_XCC_ID)
    v_lshrrev_b32 v1, 6, v0
    v_and_b32 v0, 63, v0
    v_readfirstlane_b32 s3, v1
    v_and_b32 v1, 15, v0
    v_lshrrev_b32 v2, 4, v0
    v_mov_b32 v3, 0xffffff00
    v_lshlrev_b32 v4, 4, v0
    s_and_b32 s38, s38, 7
    s_add_u32 s38, s38, 1
    s_and_b32 s30, s2, 7
    s_lshr_b32 s31, s2, 5
    s_and_b32 s83, s2, 1
    s_sub_u32 s29, 4, s83
    s_lshr_b32 s28, s30, 1
    s_mul_i32 s28, s28, 7
    s_lshl_b32 s83, s83, 2
    s_add_u32 s39, s28, s83
    s_lshl_b32 s28, s39, 3
    s_mul_i32 s83, s31, s29
    s_add_u32 s28, s28, s83
    s_lshl_b32 s28, s28, 3
    s_mov_b32 s80, 0x05040100
    s_mov_b32 s81, 0x07060302
    """)
    if stamps:
        for i in range(1, 8): a(f"s_mov_b64 s[{86+2*i}:{87+2*i}], 0")
    if opts.get("kearly"):
        a("s_cmp_lg_u32 s3, 3")
        a("s_cbranch_scc1 L_noinit")
        a(f"""
        v_mov_b32 v8, 0
        v_lshlrev_b32 v9, 2, v0
        ds_write_b32 v9, v8 offset:{L_CNT}
        s_waitcnt lgkmcnt(0)
        """)
        a.label("L_noinit")
        a("s_barrier")
    a("s_cmp_ge_u32 s3, 12")
    a("s_cbranch_scc1 L_cw")
    a("s_cmp_ge_u32 s3, 4")
    a("s_cbranch_scc1 L_attn")
    a("s_cmp_eq_u32 s3, 3")
    a("s_cbranch_scc1 L_h3")

    def ws_setup():
        a("s_load_dword s78, s[76:77], 0")
        mk_srd(SW, 76, 0x20000000)

    a("""
    v_and_b32 v5, 1, v1
    v_lshlrev_b32 v5, 10, v5
    v_bfe_u32 v6, v1, 1, 1
    v_lshl_add_u32 v5, v6, 6, v5
    v_lshl_add_u32 v5, v2, 4, v5
    v_lshrrev_b32 v6, 3, v1
    v_lshlrev_b32 v6, 2, v6
    v_add_u32 v6, v6, v2
    v_lshlrev_b32 v6, 3, v6
    v_and_b32 v7, 7, v1
    v_lshlrev_b32 v7, 4, v7
    s_mov_b32 s42, 0
    """)
    a("s_cmp_eq_u32 s3, 0")
    a("s_cbranch_scc0 L_h12")
    W0, T0, ACC, XA, PUB = 16, 80, 16, 112, 100
    def tile_loads(stride, nblk):
        for t in range(nblk):
            a(f"buffer_load_dwordx4 v[{XA+4*t}:{XA+4*t+3}], v5, {srd(SA)}, s83 offen offset:{128*t}")
        for t in range(nblk):
            for e in range(8):
                r = W0 + 4 * (8 * t + e)
                a(f"buffer_load_dwordx4 v[{r}:{r+3}], v8, {srd(SB)}, s82 offen nt")
                if not (t == nblk - 1 and e == 7):
                    a(f"s_add_u32 s82, s82, {stride if e < 7 else 57 * stride}")
    def tile_compute(nblk):
        for t in range(nblk):
            a(f"s_waitcnt vmcnt({8*(nblk-1-t)})")
            transpose(W0 + 32 * t, T0)
            for dd in range(8):
                c = f"v[{ACC+4*dd}:{ACC+4*dd+3}]" if t else "0"
                a(f"v_mfma_f32_16x16x32_bf16 v[{ACC+4*dd}:{ACC+4*dd+3}], v[{XA+4*t}:{XA+4*t+3}], v[{T0+4*dd}:{T0+4*dd+3}], {c}")
        tags_ready()
        for G in range(4):
            b, half = G >> 1, G & 1
            exec_rows(G)
            for m in range(4):
                d = ACC + 4 * (4 * half + m)
                a(f"v_add_f32_dpp v{PUB+m}, v{d+2+b}, v{d+b} row_ror:8 row_mask:0xf bank_mask:0xf")
        exec_all()
    def pub_store(T, mod):
        for m in range(4):
            a(f"v_and_or_b32 v{PUB+m}, v{PUB+m}, v3, s{T+m}")
        exec_set(0x00FF00FF, 0x00FF00FF)
        a(f"buffer_store_dwordx4 v[{PUB}:{PUB+3}], v{PUB+4}, {srd(SW)}, s41 offen {mod}")
        exec_all()
    def pub_restore():
        sk = U("L_nr")
        a("s_cmp_eq_u32 s40, 0")
        a(f"s_cbranch_scc1 {sk}")
        pub_store(TG, "sc1")
        a.label(sk)

    a("""
    v_lshlrev_b32 v8, 13, v6
    v_add_u32 v8, v8, v7
    s_bfe_u32 s84, s2, 0x20003
    s_lshl_b32 s85, s30, 3
    s_add_u32 s85, s85, s31
    s_lshl_b32 s82, s84, 20
    s_lshl_b32 s83, s85, 7
    s_add_u32 s82, s82, s83
    s_lshl_b32 s83, s84, 8
    s_waitcnt lgkmcnt(0)
    """)
    mk_srd(SA, 52, 2048)
    mk_srd(SB, 58, 4194304)
    tile_loads(8192, 2)
    if not opts.get("kearly"): a("s_barrier")
    ws_setup()
    a(f"""
    v_lshrrev_b32 v12, 1, v2
    v_lshlrev_b32 v12, 14, v12
    v_and_b32 v13, 1, v2
    v_lshl_add_u32 v12, v13, 4, v12
    v_lshl_add_u32 v{PUB+4}, v7, 1, v12
    s_lshl_b32 s41, s84, 15
    s_lshl_b32 s83, s85, 8
    s_add_u32 s41, s41, s83
    s_add_u32 s41, s41, {WS_QP}
    s_mov_b32 s40, 1
    """)
    tile_compute(2)
    a(f"v_lshl_add_u32 v{PUB+4}, v7, 1, v12")
    pub_store(TL, "")
    stamp(1)
    lds_add(C_Q, 8)
    a("s_branch L_hrel")

    a.label("L_h12")
    a("""
    s_movk_i32 s82, 3584
    v_mul_lo_u32 v8, v6, s82
    v_add_u32 v8, v8, v7
    s_bfe_u32 s84, s2, 0x30003
    s_lshr_b32 s43, s2, 6
    s_add_u32 s85, s39, s43
    s_mul_i32 s82, s84, 229376
    s_lshl_b32 s83, s85, 7
    s_add_u32 s82, s82, s83
    s_lshl_b32 s83, s84, 7
    s_mov_b32 s40, 0
    s_waitcnt lgkmcnt(0)
    """)
    mk_srd(SA, 52, 2048)
    a(f"""
    s_cmp_eq_u32 s3, 1
    s_cselect_b32 s{SB}, s64, s66
    s_cselect_b32 s{SB+1}, s65, s67
    s_and_b32 s{SB+1}, s{SB+1}, 0xffff
    s_mov_b32 s{SB+2}, 1835008
    s_mov_b32 s{SB+3}, 0x20000
    """)
    a("s_cmp_eq_u32 s3, 1")
    a("s_cbranch_scc1 L_h12a")
    mk_srd(SC, 70, 1024)
    a(f"""
    buffer_load_dwordx4 v[116:119], v4, {srd(SA)}, 0 offen
    buffer_load_dwordx4 v[120:123], v4, {srd(SA)}, 0 offen offset:1024
    buffer_load_dwordx4 v[124:127], v4, {srd(SC)}, 0 offen
    """)
    a.label("L_h12a")
    if opts.get("gu_late", False):
        a("s_barrier")
        ws_setup()
        lds_wait(C_K, 8, 10, sleep=1)
    a("s_cmp_ge_u32 s43, s29")
    a("s_cbranch_scc1 L_h12_skip")
    tile_loads(3584, 1)
    a.label("L_h12_skip")
    if opts.get("gu_late", False):
        lds_add(C_K, 10)
    else:
        if not opts.get("kearly"): a("s_barrier")
        ws_setup()
    a("s_cmp_ge_u32 s43, s29")
    a("s_cbranch_scc1 L_h12_none")
    a(f"""
    v_lshrrev_b32 v12, 1, v2
    v_mul_u32_u24 v12, 7168, v12
    v_and_b32 v13, 1, v2
    v_lshl_add_u32 v12, v13, 4, v12
    s_mul_i32 s41, s84, 14336
    s_lshl_b32 s83, s85, 8
    s_add_u32 s41, s41, s83
    s_sub_u32 s83, s3, 1
    s_lshl_b32 s83, s83, 17
    s_add_u32 s41, s41, s83
    s_add_u32 s41, s41, {WS_GP}
    s_mov_b32 s40, 1
    """)
    tile_compute(1)
    a(f"v_lshl_add_u32 v{PUB+4}, v7, 1, v12")
    pub_store(TL, "")
    stamp(1)
    a("s_branch L_h12_done")
    a.label("L_h12_none")
    a(f"v_mov_b32 v{PUB+4}, 0")
    a(f"s_mov_b32 s41, {WS_STAMP}")
    tags_ready()
    a.label("L_h12_done")
    a("s_cmp_eq_u32 s3, 2")
    a("s_cbranch_scc1 L_ffn")
    lds_add(C_Q, 8)
    a("s_branch L_hrel")

    a.label("L_qgather")
    a(f"""
    s_and_b32 s82, s2, 15
    s_lshl_b32 s82, s82, 11
    s_add_u32 s82, s82, {WS_QP}
    s_add_u32 s83, s82, 32768
    s_add_u32 s84, s82, 65536
    s_add_u32 s85, s82, 98304
    v_mov_b32 v8, 0
    """)
    lds_wait(C_K, opts.get("qn", 4), 10, sleep=1)
    exec_set(1, 0)
    a(f"buffer_load_dword v9, v8, {srd(SW)}, 0 offen offset:256")
    exec_all()
    a("s_waitcnt vmcnt(0)")
    stamp(1)
    qloads = [f"buffer_load_dwordx4 v[{16+8*ks+4*hf}:{19+8*ks+4*hf}], v4, {srd(SW)}, s{82+ks} offen offset:{1024*hf} sc1" for ks in range(4) for hf in range(2)]
    for l in qloads: a(l)
    lds_add(C_G, 8)
    poll(qloads, [16 + 4 * x for x in range(8)], (8, 9, 10, 11, 12), on_timeout=lambda: None, issued=True)
    for m in range(8):
        a(f"v_add_f32 v{16+m}, v{16+m}, v{24+m}")
        a(f"v_add_f32 v{32+m}, v{32+m}, v{40+m}")
    for m in range(8): a(f"v_add_f32 v{16+m}, v{16+m}, v{32+m}")
    a(f"""
    v_cvt_pk_bf16_f32 v8, v16, v17
    v_cvt_pk_bf16_f32 v9, v18, v19
    v_cvt_pk_bf16_f32 v10, v20, v21
    v_cvt_pk_bf16_f32 v11, v22, v23
    v_lshlrev_b32 v12, 3, v0
    ds_write_b64 v12, v[8:9] offset:{L_Q}
    ds_write_b64 v12, v[10:11] offset:{L_Q+512}
    s_waitcnt lgkmcnt(0)
    """)
    lds_add(C_Q, 8)
    stamp(2)
    a("s_branch L_h3b")
    a.label("L_hrel")
    a("s_cmp_eq_u32 s42, 1")
    a("s_cbranch_scc1 L_fin")
    release_wait(pub_restore, 8)

    a.label("L_ffn")
    lds_add(C_Q, 8)
    a(f"""
    v_and_b32 v8, 7, v0
    v_mul_u32_u24 v8, 14336, v8
    v_lshrrev_b32 v9, 3, v0
    v_lshl_add_u32 v8, v9, 4, v8
    s_lshl_b32 s82, s28, 2
    s_add_u32 s82, s82, {WS_GP}
    s_add_u32 s83, s82, 7168
    s_add_u32 s84, s82, {WS_UP-WS_GP}
    s_add_u32 s85, s84, 7168
    s_waitcnt vmcnt(0)
    v_mov_b32 v14, 0
    v_mov_b32 v15, 0
    """)
    for m in range(4):
        a(f"v_dot2_f32_bf16 v14, v{116+m}, v{124+m}, v14")
        a(f"v_dot2_f32_bf16 v15, v{120+m}, v{124+m}, v15")
    a("s_nop 3")
    rowreduce([14, 15], "v_add_f32")
    xrow_reduce([14, 15], "v_add_f32", [10, 11])
    a("""
    v_mul_f32 v14, 0xbfb8aa3b, v14
    v_mul_f32 v15, 0xbfb8aa3b, v15
    v_exp_f32 v14, v14
    v_exp_f32 v15, v15
    v_add_f32 v14, 1.0, v14
    v_add_f32 v15, 1.0, v15
    v_rcp_f32 v14, v14
    v_rcp_f32 v15, v15
    """)
    for m in range(16): a(f"v_mov_b32 v{16+m}, 0")
    lds_wait(C_G, 1, 10, sleep=2)
    a("s_cmp_eq_u32 s29, 4")
    a("s_cselect_b32 exec_hi, -1, 0xffff")
    poll([f"buffer_load_dwordx4 v[{16+4*x}:{19+4*x}], v8, {srd(SW)}, s{82+x} offen sc1" for x in range(4)],
         [16, 20, 24, 28], (9, 10, 11, 12, 13), on_timeout=pub_restore, slowflag=42)
    for ctl in ("quad_perm:[1,0,3,2]", "quad_perm:[2,3,0,1]", "row_half_mirror"):
        for m in range(16):
            a(f"v_add_f32_dpp v{16+m}, v{16+m}, v{16+m} {ctl} row_mask:0xf bank_mask:0xf")
    for m in range(8): a(f"v_mul_f32 v{32+m}, 0xbfb8aa3b, v{16+m}")
    for m in range(8): a(f"v_exp_f32 v{32+m}, v{32+m}")
    for m in range(8): a(f"v_add_f32 v{32+m}, 1.0, v{32+m}")
    for m in range(8): a(f"v_rcp_f32 v{32+m}, v{32+m}")
    for m in range(8): a(f"v_mul_f32 v{16+m}, v{16+m}, v{24+m}")
    for m in range(8): a(f"v_mul_f32 v{16+m}, v{16+m}, v{32+m}")
    a("v_sub_f32 v10, 1.0, v14")
    a("v_sub_f32 v11, 1.0, v15")
    for m in range(4): a(f"v_mul_f32 v{16+m}, v{16+m}, v10")
    for m in range(4): a(f"v_mul_f32 v{20+m}, v{20+m}, v11")
    a(f"""
    v_lshrrev_b32 v9, 3, v0
    v_lshlrev_b32 v9, 4, v9
    v_mov_b32 v12, 0
    """)
    exec_set(0x01010101, 0x01010101)
    a(f"ds_write_b128 v9, v[16:19] offset:{L_H}")
    a(f"ds_write_b128 v9, v[20:23] offset:{L_H+128}")
    exec_set(1, 0)
    a(f"ds_write_b64 v12, v[14:15] offset:{L_G}")
    exec_all()
    a("s_waitcnt lgkmcnt(0)")
    lds_add(C_H, 8)
    stamp(2)
    a("s_branch L_hrel")

    a.label("L_h3")
    if not opts.get("kearly"):
        a(f"""
        v_lshlrev_b32 v9, 2, v0
        v_mov_b32 v8, 0
        ds_write_b32 v9, v8 offset:{L_CNT}
        s_waitcnt lgkmcnt(0)
        s_barrier
        """)
    else:
        a("s_waitcnt lgkmcnt(0)")
    ws_setup()
    tags_ready()
    a("s_branch L_qgather")
    a.label("L_h3b")
    a("s_cmp_ge_u32 s2, 32")
    a("s_cbranch_scc1 L_fin")
    mk_srd(SC, 72, 2048)
    a(f"""
    v_lshrrev_b32 v8, 3, v0
    v_lshlrev_b32 v8, 13, v8
    v_and_b32 v9, 7, v0
    v_lshl_add_u32 v48, v9, 4, v8
    v_add_u32 v49, 4096, v48
    s_lshr_b32 s82, s2, 3
    s_lshl_b32 s82, s82, 16
    s_lshl_b32 s83, s30, 7
    s_add_u32 s82, s82, s83
    s_add_u32 s82, s82, {WS_YP}
    v_lshlrev_b32 v8, 3, v0
    s_bfe_u32 s84, s2, 0x10002
    s_lshl_b32 s84, s84, 10
    s_lshr_b32 s83, s2, 3
    s_lshl_b32 s83, s83, 8
    s_add_u32 s84, s84, s83
    s_and_b32 s83, s2, 3
    s_lshl_b32 s83, s83, 6
    s_add_u32 s84, s84, s83
    s_add_u32 s85, s78, 1
    v_mov_b32 v5, s85
    v_mov_b32 v6, 0
    """)
    if opts.get("ywarm"):
        for i in range(8):
            a(f"buffer_load_dwordx4 v[{16+4*i}:{19+4*i}], v{48+(i>>2)}, {srd(SW)}, s82 offen offset:{1024*(i&3)} sc1")
    lds_wait(C_Y if opts.get("ywait", True) else C_O, 4 if opts.get("ywait", True) else 8, 10, sleep=2)
    stamp(4)
    poll([f"buffer_load_dwordx4 v[{16+4*i}:{19+4*i}], v{48+(i>>2)}, {srd(SW)}, s82 offen offset:{1024*(i&3)} sc1" for i in range(8)],
         [16 + 4 * i for i in range(8)], (9, 10, 11), T=TG)
    stamp(5)
    for st in (4, 2, 1):
        for i in range(st):
            for m in range(4): a(f"v_add_f32 v{16+4*i+m}, v{16+4*i+m}, v{16+4*(i+st)+m}")
    rowreduce([16, 17, 18, 19], "v_add_f32", (8,))
    xrow_reduce([16, 17, 18, 19], "v_add_f32", [20, 21, 22, 23])
    a("v_cvt_pk_bf16_f32 v16, v16, v17")
    a("v_cvt_pk_bf16_f32 v17, v18, v19")
    exec_set(0xFF, 0)
    a(f"buffer_store_dwordx2 v[16:17], v8, {srd(SC)}, s84 offen")
    a("s_cmp_lg_u32 s2, 0")
    a("s_cbranch_scc1 L_noepoch")
    exec_set(1, 0)
    a(f"buffer_store_dword v5, v6, {srd(SW)}, 0 offen sc1")
    a.label("L_noepoch")
    exec_all()
    if opts.get("padto"):
        a(f"s_sub_u32 s32, s32, {opts.get('qat', 330)}")
        wait_until(opts["padto"])
    stamp(7)
    a("s_branch L_fin")

    a.label("L_cw")
    WC, TC, D, PL, AO = 16, 40, 72, 104, 112
    a(f"""
    s_sub_u32 s84, s3, 12
    v_lshlrev_b32 v8, 15, v2
    v_lshl_add_u32 v8, v1, 4, v8
    v_lshlrev_b32 v9, 10, v2
    v_lshl_add_u32 v9, v1, 4, v9
    s_lshl_b32 s82, s30, 2
    s_add_u32 s82, s82, s84
    s_lshl_b32 s82, s82, 17
    s_lshl_b32 s83, s31, 10
    s_add_u32 s82, s82, s83
    s_bfe_u32 s85, s2, 0x20003
    s_lshl_b32 s85, s85, 8
    s_add_u32 s82, s82, s85
    s_lshl_b32 s79, s84, 3
    s_add_u32 s83, s28, s79
    s_lshl_b32 s83, s83, 10
    s_add_u32 s83, s83, s85
    s_waitcnt lgkmcnt(0)
    """)
    mk_srd(SA, 60, 4194304)
    mk_srd(SB, 68, 1835008)
    if not opts.get("kearly"): a("s_barrier")
    ws_setup()
    tags_ready()
    lds_add(C_Q, 10)
    lds_wait(C_V, 8, 10, sleep=4)
    for e in range(4):
        a(f"buffer_load_dwordx4 v[{WC+4*e}:{WC+4*e+3}], v8, {srd(SA)}, s82 offen nt")
        if e < 3: a("s_add_u32 s82, s82, 8192")
    a(f"buffer_load_dwordx4 v[{WC+16}:{WC+19}], v9, {srd(SB)}, s83 offen nt")
    a("s_add_u32 s83, s83, 4096")
    a(f"buffer_load_dwordx4 v[{WC+20}:{WC+23}], v9, {srd(SB)}, s83 offen nt")
    stamp(1)
    a(f"""
    v_and_b32 v8, 1, v1
    v_lshlrev_b32 v8, 7, v8
    v_lshrrev_b32 v9, 1, v1
    v_add_u32 v8, v8, v9
    v_lshlrev_b32 v8, 11, v8
    v_lshl_add_u32 v9, v2, 4, v8
    s_lshl_b32 s82, s30, 15
    s_lshl_b32 s83, s31, 8
    s_add_u32 s82, s82, s83
    s_lshl_b32 s79, s84, 6
    s_add_u32 s82, s82, s79
    s_add_u32 s82, s82, {WS_OP}
    s_add_u32 s83, s82, 16384
    v_lshrrev_b32 v12, 1, v2
    v_lshlrev_b32 v12, 9, v12
    v_and_b32 v13, 1, v2
    v_lshl_add_u32 v12, v13, 4, v12
    v_lshl_add_u32 v12, v1, 5, v12
    s_lshl_b32 s79, s84, 10
    v_add_u32 v13, s79, v12
    s_bfe_u32 s40, s2, 0x20003
    s_lshl_b32 s40, s40, 6
    s_lshl_b32 s79, s30, 3
    s_add_u32 s40, s40, s79
    s_add_u32 s40, s40, s31
    s_lshl_b32 s40, s40, 10
    s_add_u32 s40, s40, {WS_YP}
    s_mov_b32 s42, 0
    """)
    for dd in range(8): a(f"v_mov_b32 v{TC+4*dd+3}, 0")
    lds_wait(C_H, 1, 10, sleep=4)
    a(f"""
    v_and_b32 v8, 1, v1
    v_lshlrev_b32 v14, 2, v8
    v_lshlrev_b32 v8, 7, v8
    v_lshl_add_u32 v8, v2, 2, v8
    s_lshl_b32 s79, s84, 5
    v_add_u32 v8, s79, v8
    ds_read_b32 v10, v8 offset:{L_H}
    ds_read_b32 v11, v8 offset:{L_H+16}
    ds_read_b32 v118, v14 offset:{L_G}
    v_lshlrev_b32 v8, 3, v2
    s_waitcnt lgkmcnt(0)
    v_cvt_pk_bf16_f32 v{AO+2}, v10, v11
    v_mov_b32 v{AO+3}, 0
    """)
    oloads = [f"buffer_load_dwordx4 v[{PL}:{PL+3}], v9, {srd(SW)}, s82 offen sc1",
              f"buffer_load_dwordx4 v[{PL+4}:{PL+7}], v9, {srd(SW)}, s83 offen sc1"]
    a("s_waitcnt vmcnt(0)")
    stamp(2)
    for l in oloads: a(l)
    transpose(WC, TC, 6)
    poll(oloads, [PL, PL + 4], (5, 6, 7, 10, 11), on_timeout=lambda: None, issued=True, slowflag=42)
    stamp(3)
    for h, x in ((0, 116), (4, 117)):
        a(f"v_bfe_u32 v{x}, v{PL+h}, 8, 2")
        a(f"v_bfe_u32 v5, v{PL+h+1}, 8, 2")
        a(f"v_bfe_u32 v6, v{PL+h+2}, 8, 2")
        a(f"v_bfe_u32 v7, v{PL+h+3}, 8, 2")
        a(f"v_lshl_or_b32 v{x}, v5, 2, v{x}")
        a(f"v_lshl_or_b32 v6, v7, 2, v6")
        a(f"v_lshl_or_b32 v{x}, v6, 4, v{x}")
        a(f"v_lshlrev_b32 v{x}, v8, v{x}")
    xrow_reduce([116, 117], "v_or_b32", [5, 6])
    a("v_max_f32 v5, v116, v117")
    rowreduce([5], "v_max_f32", (8, 4, 2))
    a(f"""
    v_sub_f32 v116, v116, v5
    v_sub_f32 v117, v117, v5
    v_exp_f32 v116, v116
    v_exp_f32 v117, v117
    v_add_f32 v6, v116, v117
    """)
    for m in range(4): a(f"v_mul_f32 v{PL+m}, v116, v{PL+m}")
    for m in range(4): a(f"v_fmac_f32 v{PL+m}, v117, v{PL+4+m}")
    rowreduce([6, PL, PL + 1, PL + 2, PL + 3], "v_add_f32", (8, 4, 2))
    a("v_rcp_f32 v6, v6")
    a("v_mul_f32 v6, v6, v118")
    for m in range(4): a(f"v_mul_f32 v{PL+m}, v6, v{PL+m}")
    a(f"v_cvt_pk_bf16_f32 v{AO}, v{PL}, v{PL+1}")
    a(f"v_cvt_pk_bf16_f32 v{AO+1}, v{PL+2}, v{PL+3}")
    stamp(4)
    for dd in range(8):
        a(f"v_mfma_f32_16x16x32_bf16 v[{D+4*dd}:{D+4*dd+3}], v[{AO}:{AO+3}], v[{TC+4*dd}:{TC+4*dd+3}], 0")
    for G in (0, 2, 1, 3):
        b, half = G >> 1, G & 1
        exec_rows(G)
        for m in range(4):
            a(f"v_mov_b32 v{16+m}, v{D+4*(4*half+m)+b}")
    exec_all()
    a(f"ds_write_b128 v13, v[16:19] offset:{L_Y}")
    a("s_waitcnt lgkmcnt(0)")
    lds_add_rtn(C_Y, 5)
    stamp(5)
    a("s_cmp_lg_u32 s79, 3")
    a("s_cbranch_scc1 L_crel")
    for x in range(4):
        a(f"ds_read_b128 v[{20+4*x}:{23+4*x}], v12 offset:{L_Y+1024*x}")
    a("s_waitcnt lgkmcnt(0)")
    for m in range(4):
        a(f"v_add_f32 v{20+m}, v{20+m}, v{24+m}")
        a(f"v_add_f32 v{28+m}, v{28+m}, v{32+m}")
    for m in range(4): a(f"v_add_f32 v{20+m}, v{20+m}, v{28+m}")
    for m in range(4): a(f"v_and_or_b32 v{20+m}, v{20+m}, v3, s{TG+m}")
    a(f"buffer_store_dwordx4 v[20:23], v12, {srd(SW)}, s40 offen sc1")
    stamp(6)
    a.label("L_crel")
    a("s_cmp_eq_u32 s42, 1")
    a("s_cbranch_scc1 L_fin")
    lds_op("ds_max_u32", C_REL, 1, 5)
    a("s_branch L_fin")

    a.label("L_attn")
    KR, VR, QB, SR, PR, FAC = 16, 48, 80, 96, 104, 108
    a("""
    s_sub_u32 s84, s3, 4
    s_and_b32 s82, s2, 15
    s_lshr_b32 s83, s2, 4
    s_lshl_b32 s85, s82, 4
    s_add_u32 s85, s85, s83
    s_lshl_b32 s82, s82, 23
    s_add_u32 s82, s82, 0x700000
    s_lshl_b32 s83, s83, 16
    s_add_u32 s82, s82, s83
    s_lshl_b32 s83, s84, 13
    s_add_u32 s82, s82, s83
    s_add_u32 s83, s82, 4096
    v_lshlrev_b32 v5, 8, v1
    v_lshl_add_u32 v5, v2, 4, v5
    v_lshlrev_b32 v6, 10, v2
    v_lshl_add_u32 v6, v1, 4, v6
    s_waitcnt lgkmcnt(0)
    """)
    mk_srd(SA, 54, 134217728)
    mk_srd(SB, 56, 134217728)
    if not opts.get("kearly"): a("s_barrier")
    for T in range(2):
        for jj in range(4):
            r = KR + 4 * (4 * T + jj)
            a(f"buffer_load_dwordx4 v[{r}:{r+3}], v5, {srd(SA)}, s{82+T} offen offset:{64*jj} nt")
    lds_add(C_K, 8)
    ws_setup()
    lds_wait(C_K, 10 if opts.get("gu_late", False) else 8, 8, sleep=1)
    if opts.get("vgate", 8) < 8:
        a(f"s_cmp_lt_u32 s84, {opts['vgate']}")
        a("s_cbranch_scc1 L_vgo")
        lds_wait(C_G, 1, 8, sleep=1)
        a.label("L_vgo")
    for e in range(8):
        r = VR + 4 * e
        a(f"buffer_load_dwordx4 v[{r}:{r+3}], v6, {srd(SB)}, s{82+(e>>2)} offen offset:{256*(e&3)} nt")
    lds_add(C_V, 8)
    stamp(1)
    tags_ready()
    a(f"""
    v_and_b32 v6, 3, v1
    v_lshlrev_b32 v6, 8, v6
    v_lshl_add_u32 v6, v2, 4, v6
    s_mov_b32 s42, 0
    v_lshlrev_b32 v13, 6, v1
    v_lshl_add_u32 v13, v2, 4, v13
    s_lshl_b32 s79, s84, 11
    v_add_u32 v13, s79, v13
    v_lshlrev_b32 v5, 2, v0
    s_lshl_b32 s79, s84, 8
    v_add_u32 v5, s79, v5
    v_mov_b32 v7, 0xfffffc00
    s_lshl_b32 s41, s85, 11
    s_add_u32 s41, s41, {WS_OP}
    v_and_b32 v14, 3, v0
    v_lshlrev_b32 v14, 3, v14
    v_lshrrev_b32 v15, v14, s37
    v_lshrrev_b32 v14, v14, s36
    v_and_b32 v14, 0xff, v14
    v_and_b32 v15, 0xff, v15
    """)
    lds_wait(C_Q, 8, 8, sleep=2)
    stamp(2)
    for jj in range(4):
        a(f"ds_read_b128 v[{QB+4*jj}:{QB+4*jj+3}], v6 offset:{L_Q+64*jj}")
    a("s_waitcnt vmcnt(8) lgkmcnt(0)")
    stamp(3)
    for jj in range(4):
        for T in range(2):
            c = f"v[{SR+4*T}:{SR+4*T+3}]" if jj else "0"
            r = KR + 4 * (4 * T + jj)
            a(f"v_mfma_f32_16x16x32_bf16 v[{SR+4*T}:{SR+4*T+3}], v[{r}:{r+3}], v[{QB+4*jj}:{QB+4*jj+3}], {c}")
    a("s_mov_b32 s79, 0x3e0293ee")
    for x in range(8): a(f"v_mul_f32 v{SR+x}, s79, v{SR+x}")
    a(f"v_max3_f32 v8, v{SR}, v{SR+1}, v{SR+2}")
    a(f"v_max3_f32 v8, v8, v{SR+3}, v{SR+4}")
    a(f"v_max3_f32 v8, v8, v{SR+5}, v{SR+6}")
    a(f"v_max_f32 v8, v8, v{SR+7}")
    xrow_reduce([8], "v_max_f32", [10])
    for x in range(8): a(f"v_sub_f32 v{SR+x}, v{SR+x}, v8")
    for x in range(8): a(f"v_exp_f32 v{SR+x}, v{SR+x}")
    a(f"v_add_f32 v9, v{SR}, v{SR+1}")
    for x in range(2, 8): a(f"v_add_f32 v9, v9, v{SR+x}")
    for x in range(4): a(f"v_cvt_pk_bf16_f32 v{PR+x}, v{SR+2*x}, v{SR+2*x+1}")
    xrow_reduce([9], "v_add_f32", [10])
    a(f"""
    v_lshlrev_b32 v10, 3, v0
    s_lshl_b32 s79, s84, 5
    v_add_u32 v10, s79, v10
    """)
    exec_set(0xF, 0)
    a(f"ds_write_b64 v10, v[8:9] offset:{L_ML}")
    exec_all()
    a("s_waitcnt lgkmcnt(0)")
    lds_add(C_ML, 10)
    def factors():
        a("v_lshlrev_b32 v8, 3, v2")
        for x in range(8):
            a(f"ds_read_b64 v[{QB+2*x}:{QB+2*x+1}], v8 offset:{L_ML+32*x}")
        a("s_waitcnt lgkmcnt(0)")
        a(f"v_max3_f32 v9, v{QB}, v{QB+2}, v{QB+4}")
        a(f"v_max3_f32 v9, v9, v{QB+6}, v{QB+8}")
        a(f"v_max3_f32 v9, v9, v{QB+10}, v{QB+12}")
        a(f"v_max_f32 v9, v9, v{QB+14}")
        for x in range(8): a(f"v_sub_f32 v{FAC+x}, v{QB+2*x}, v9")
        for x in range(8): a(f"v_exp_f32 v{FAC+x}, v{FAC+x}")
        a(f"v_mul_f32 v117, v{FAC}, v{QB+1}")
        for x in range(1, 8): a(f"v_fmac_f32 v117, v{FAC+x}, v{QB+2*x+1}")
        a("""
        v_log_f32 v116, v117
        v_rcp_f32 v117, v117
        v_add_f32 v116, v116, v9
        v_lshlrev_b32 v8, 1, v1
        v_lshrrev_b32 v116, v8, v116
        v_and_b32 v116, 3, v116
        v_lshl_or_b32 v116, v116, 8, v14
        s_mov_b32 s42, 1
        """)
        for x in range(8): a(f"v_mul_f32 v{FAC+x}, v{FAC+x}, v117")
    lds_wait(C_ML, 8, 10, sleep=1)
    factors()
    a("v_mov_b32 v10, 0")
    a("v_mov_b32 v11, 1")
    for m in range(4):
        a(f"s_waitcnt vmcnt({6-2*m})")
        if m == 3: stamp(4)
        perm_pair(VR, KR, m)
    exec_set(0x000F000F, 0x000F000F)
    for dd in range(8):
        a(f"v_mfma_f32_16x16x32_bf16 v[{VR+4*dd}:{VR+4*dd+3}], v[{KR+4*dd}:{KR+4*dd+3}], v[{PR}:{PR+3}], 0")
    for dd in range(8):
        a(f"ds_write_b128 v13, v[{VR+4*dd}:{VR+4*dd+3}] offset:{L_O+256*dd}")
    exec_set(1, 0)
    a(f"ds_add_u32 v10, v11 offset:{C_O}")
    exec_all()
    stamp(5)
    lds_wait(C_O, 8, 8)
    stamp(6)
    for x in range(8):
        a(f"ds_read_b32 v{QB+x}, v5 offset:{L_O+2048*x}")
    for x in range(8):
        a(f"s_waitcnt lgkmcnt({7-x})" if not stamps else "s_waitcnt lgkmcnt(0)")
        if x == 0: a(f"v_mul_f32 v12, v{FAC}, v{QB}")
        else: a(f"v_fmac_f32 v12, v{FAC+x}, v{QB+x}")
    a("v_and_or_b32 v12, v12, v7, v116")
    a(f"buffer_store_dword v12, v5, {srd(SW)}, s41 offen")
    stamp(7)
    def o_restore():
        a("v_and_or_b32 v12, v12, v3, v15")
        a(f"buffer_store_dword v12, v5, {srd(SW)}, s41 offen sc1")
    release_wait(o_restore, 10)

    for c in cold: c()

    a.label("L_fin")
    if stamps:
        a(f"""
        s_waitcnt lgkmcnt(0) vmcnt(0)
        s_lshl_b32 s82, s2, 4
        s_add_u32 s82, s82, s3
        s_lshl_b32 s82, s82, 6
        s_add_u32 s82, s82, {WS_STAMP}
        v_mov_b32 v4, 0
        """)
        for i in range(16): a(f"v_mov_b32 v{16+i}, s{86+i}")
        exec_set(1, 0)
        for i in range(4):
            a(f"buffer_store_dwordx4 v[{16+4*i}:{19+4*i}], v4, {srd(SW)}, s82 offen offset:{16*i}")
    a.label("L_end")
    a("s_endpgm")
    R('.section .rodata,"a"')
    R(".p2align 6")
    R(f".amdhsa_kernel {NAME}_kernel")
    R("  .amdhsa_next_free_vgpr 128")
    R("  .amdhsa_next_free_sgpr 102")
    R("  .amdhsa_accum_offset 128")
    R("  .amdhsa_group_segment_fixed_size 0")
    R("  .amdhsa_kernarg_size 104")
    R("  .amdhsa_user_sgpr_count 2")
    R("  .amdhsa_user_sgpr_kernarg_segment_ptr 1")
    R("  .amdhsa_system_sgpr_workgroup_id_x 1")
    R(".end_amdhsa_kernel")
    return a.text()

if __name__ == "__main__":
    variants = {
        "fin": dict(qn=3, ywarm=True),
        "finp1": dict(qn=3, ywarm=True, perm=1),
        "finp2": dict(qn=3, ywarm=True, perm=2),
    }
    for n, o in variants.items():
        open(f"work/{n}.s", "w").write(gen(False, o))
        open(f"work/{n}s.s", "w").write(gen(True, o))
```

```python
import sys
from asmlib import Asm
NAME = "gated_mix__sliding_block_cached__swiglu_ffn__decode"

WS_FL = 0x10000
WS_QP = 0x20000
WS_GP = 0x40000
WS_UP = 0x60000
WS_YP = 0x80000
WS_OP = 0x100000
WS_STAMP = 0x10000000
L_Q = 0
L_ML = 1024
L_CNT = 1280
C_Q, C_ML, C_O, C_H, C_Y, C_K, C_V, C_REL, C_G = [L_CNT + 4 * i for i in range(9)]
L_H = 1408
L_G = 1664
L_Y = 2048
L_O = 6144
LDS_BYTES = L_O + 8 * 2048
SPIN_MAX = 60000
NWAVES = 16
SA, SB, SC, SW = 4, 8, 12, 16
TL, TG = 20, 24
S_F0, S_NU, S_X8, S_DD0 = 28, 29, 30, 31
S_SELLO, S_SELHI = 80, 81
def srd(b): return f"s[{b}:{b+3}]"

def gen(stamps=False, opts=None):
    opts = opts or {}
    FAST_N = opts.get("fast_n", 150)
    REL_N = opts.get("rel_n", 120)
    a = Asm()
    R = a.raw
    uid = [0]
    def U(p):
        uid[0] += 1
        return f"{p}_{uid[0]}"
    R(f"; @launch grid=(256,1,1) block=({64*NWAVES},1,1) lds={LDS_BYTES}")
    R('.amdgcn_target "amdgcn-amd-amdhsa--gfx950"')
    R(".text")
    R(f".globl {NAME}_kernel")
    R(".p2align 8")
    R(f".type {NAME}_kernel,@function")
    R(f"{NAME}_kernel:")
    def stamp(i):
        if stamps: a(f"s_memrealtime s[{86+2*i}:{87+2*i}]")
    def mk_srd(b, p, size):
        a(f"s_mov_b32 s{b}, s{p}")
        a(f"s_and_b32 s{b+1}, s{p+1}, 0xffff")
        a(f"s_mov_b32 s{b+2}, {size}")
        a(f"s_mov_b32 s{b+3}, 0x20000")
    def exec_set(lo, hi):
        a(f"s_mov_b32 exec_lo, {lo:#x}")
        a(f"s_mov_b32 exec_hi, {hi:#x}")
    def exec_rows(G):
        exec_set((0xFFFF << (16 * G)) & 0xFFFFFFFF if G < 2 else 0, (0xFFFF << (16 * (G - 2))) & 0xFFFFFFFF if G >= 2 else 0)
    def exec_all(): a("s_mov_b64 exec, -1")
    def tagcheck(regs, acc, t0, t1, T):
        first = True
        for q in regs:
            for h in range(2):
                a(f"v_xor_b32 v{t0}, s{T+2*h}, v{q+2*h}")
                a(f"v_xor_b32 v{t1}, s{T+2*h+1}, v{q+2*h+1}")
                if first:
                    a(f"v_or_b32 v{acc}, v{t0}, v{t1}"); first = False
                else:
                    a(f"v_or3_b32 v{acc}, v{acc}, v{t0}, v{t1}")
        a(f"v_and_b32 v{acc}, 0xff, v{acc}")
        a(f"v_cmp_ne_u32 vcc, 0, v{acc}")
    def tagcheck2(regs, acc, t0, t1, t2, t3):
        a(f"v_mov_b32 v{acc}, 0")
        for q in regs:
            for T, x in ((TL, t2), (TG, t3)):
                a(f"v_xor_b32 v{t0}, s{T}, v{q}")
                a(f"v_xor_b32 v{t1}, s{T+1}, v{q+1}")
                a(f"v_or_b32 v{x}, v{t0}, v{t1}")
                a(f"v_xor_b32 v{t0}, s{T+2}, v{q+2}")
                a(f"v_xor_b32 v{t1}, s{T+3}, v{q+3}")
                a(f"v_or3_b32 v{x}, v{x}, v{t0}, v{t1}")
                a(f"v_and_b32 v{x}, 0xff, v{x}")
            a(f"v_min_u32 v{t2}, v{t2}, v{t3}")
            a(f"v_or_b32 v{acc}, v{acc}, v{t2}")
        a(f"v_cmp_ne_u32 vcc, 0, v{acc}")
    def lds_op(op, off, val, vt):
        a(f"v_mov_b32 v{vt}, 0")
        a(f"v_mov_b32 v{vt+1}, {val}")
        a("s_mov_b64 s[46:47], exec")
        exec_set(1, 0)
        a(f"{op} v{vt}, v{vt+1} offset:{off}")
        a("s_mov_b64 exec, s[46:47]")
    def lds_add(off, vt): lds_op("ds_add_u32", off, 1, vt)
    def lds_add_rtn(off, vt):
        a(f"v_mov_b32 v{vt}, 0")
        a(f"v_mov_b32 v{vt+1}, 1")
        exec_set(1, 0)
        a(f"ds_add_rtn_u32 v{vt+1}, v{vt}, v{vt+1} offset:{off}")
        a("s_waitcnt lgkmcnt(0)")
        a(f"v_readfirstlane_b32 s79, v{vt+1}")
        exec_all()
    def lds_wait(off, val, vt, sleep=0):
        lp, ok = U("L_lw"), U("L_lok")
        a("s_mov_b32 s79, 0")
        a(f"v_mov_b32 v{vt+1}, 0")
        a.label(lp)
        a(f"ds_read_b32 v{vt}, v{vt+1} offset:{off}")
        a("s_waitcnt lgkmcnt(0)")
        a(f"v_cmp_gt_u32 vcc, {val}, v{vt}")
        a(f"s_cbranch_vccz {ok}")
        if sleep: a(f"s_sleep {sleep}")
        a(f"s_add_u32 s79, s79, 1")
        a(f"s_cmp_lt_u32 s79, {SPIN_MAX*16}")
        a(f"s_cbranch_scc1 {lp}")
        a.label(ok)
    cold = []
    def poll(loads, regs, tmps, T=TL, on_timeout=None, issued=False, between=None, slowflag=None):
        lp, ok, wt = U("L_poll"), U("L_pok"), U("L_pwt")
        a("s_mov_b32 s79, 0")
        if issued: a(f"s_branch {wt}")
        a.label(lp)
        for l in loads: a(l)
        if issued: a.label(wt)
        a("s_waitcnt vmcnt(0)")
        tagcheck(regs, tmps[0], tmps[1], tmps[2], T)
        a(f"s_cbranch_vccz {ok}")
        a("s_mov_b64 exec, vcc")
        a(f"s_add_u32 s79, s79, 1")
        a(f"s_cmp_lt_u32 s79, {FAST_N if on_timeout else SPIN_MAX}")
        a(f"s_cbranch_scc1 {lp}")
        if on_timeout:
            sl = U("L_slow")
            a(f"s_branch {sl}")
            def slow():
                a.label(sl)
                a("s_mov_b64 s[44:45], exec")
                exec_all()
                lds_op("ds_max_u32", C_REL, 2, tmps[0])
                on_timeout()
                if slowflag: a(f"s_mov_b32 s{slowflag}, 1")
                a("s_mov_b64 exec, s[44:45]")
                a("s_mov_b32 s79, 0")
                lp2 = U("L_sp")
                a.label(lp2)
                for l in loads: a(l)
                a("s_waitcnt vmcnt(0)")
                tagcheck2(regs, *tmps)
                a(f"s_cbranch_vccz {ok}")
                a("s_mov_b64 exec, vcc")
                a("s_sleep 4")
                a(f"s_add_u32 s79, s79, 1")
                a(f"s_cmp_lt_u32 s79, {SPIN_MAX}")
                a(f"s_cbranch_scc1 {lp2}")
                a(f"s_branch {ok}")
            cold.append(slow)
        a.label(ok)
        exec_all()
    def release_wait(restore, vt):
        lp, rs = U("L_rw"), U("L_rs")
        a("s_mov_b32 s79, 0")
        a(f"v_mov_b32 v{vt+1}, 0")
        a.label(lp)
        a("s_sleep 8")
        a(f"ds_read_b32 v{vt}, v{vt+1} offset:{C_REL}")
        a("s_waitcnt lgkmcnt(0)")
        a(f"v_readfirstlane_b32 s43, v{vt}")
        a("s_cmp_eq_u32 s43, 1")
        a("s_cbranch_scc1 L_fin")
        a("s_cmp_eq_u32 s43, 2")
        a(f"s_cbranch_scc1 {rs}")
        a(f"s_add_u32 s79, s79, 1")
        a(f"s_cmp_lt_u32 s79, {REL_N}")
        a(f"s_cbranch_scc1 {lp}")
        lds_op("ds_max_u32", C_REL, 2, vt)
        a.label(rs)
        restore()
        a("s_branch L_fin")
    def wait_until(ticks):
        lp = U("L_wu")
        a(f"s_add_u32 s32, s32, {ticks}")
        a.label(lp)
        a("s_sleep 2")
        a("s_memrealtime s[34:35]")
        a("s_waitcnt lgkmcnt(0)")
        a("s_sub_u32 s34, s34, s32")
        a("s_cmp_lt_i32 s34, 0")
        a(f"s_cbranch_scc1 {lp}")
    def perm_pair(Rb, Tb, m):
        for p in range(4):
            a(f"v_perm_b32 v{Tb+4*(2*p)+m}, v{Rb+4*(2*m+1)+p}, v{Rb+4*(2*m)+p}, s{S_SELLO}")
            a(f"v_perm_b32 v{Tb+4*(2*p+1)+m}, v{Rb+4*(2*m+1)+p}, v{Rb+4*(2*m)+p}, s{S_SELHI}")
    def transpose(Rb, Tb, ne=8):
        for m in range(ne // 2): perm_pair(Rb, Tb, m)
    def rowreduce(regs, op, rors=(8, 4, 2, 1)):
        for r in rors:
            for x in regs:
                a(f"{op}_dpp v{x}, v{x}, v{x} row_ror:{r} row_mask:0xf bank_mask:0xf")
    def xrow_reduce(regs, op, tmps):
        for sw in ("v_permlane16_swap_b32", "v_permlane32_swap_b32"):
            for x, t in zip(regs, tmps): a(f"v_mov_b32 v{t}, v{x}")
            for x, t in zip(regs, tmps): a(f"{sw} v{x}, v{t}")
            for x, t in zip(regs, tmps): a(f"{op} v{x}, v{x}, v{t}")
    def tags_ready():
        a(f"""
        s_waitcnt lgkmcnt(0)
        s_add_u32 s79, s78, 1
        s_mul_i32 s79, s79, 9
        s_mul_i32 s37, s79, 0x9E3779B1
        s_add_u32 s79, s79, s38
        s_mul_i32 s36, s79, 0x9E3779B1
        s_and_b32 s{TL}, s36, 0xff
        s_bfe_u32 s{TL+1}, s36, 0x80008
        s_bfe_u32 s{TL+2}, s36, 0x80010
        s_lshr_b32 s{TL+3}, s36, 24
        s_and_b32 s{TG}, s37, 0xff
        s_bfe_u32 s{TG+1}, s37, 0x80008
        s_bfe_u32 s{TG+2}, s37, 0x80010
        s_lshr_b32 s{TG+3}, s37, 24
        """)

    stamp(0)
    a("s_cmp_ge_u32 s2, 256")
    a("s_cbranch_scc1 L_end")
    if opts.get("perm") == 1:
        a("s_lshr_b32 s3, s2, 3"); a("s_lshl_b32 s2, s2, 5"); a("s_or_b32 s2, s2, s3"); a("s_and_b32 s2, s2, 255")
    if opts.get("perm") == 2:
        a("s_cmp_lt_u32 s2, 2"); a("s_cselect_b32 s3, 1, 0"); a("s_xor_b32 s2, s2, s3")
    a("""
    s_load_dwordx16 s[52:67], s[0:1], 0
    s_load_dwordx8 s[68:75], s[0:1], 64
    s_load_dwordx2 s[76:77], s[0:1], 96
    s_getreg_b32 s38, hwreg(HW_REG_XCC_ID)
    v_lshrrev_b32 v1, 6, v0
    v_and_b32 v0, 63, v0
    v_readfirstlane_b32 s3, v1
    v_and_b32 v1, 15, v0
    v_lshrrev_b32 v2, 4, v0
    v_mov_b32 v3, 0xffffff00
    v_lshlrev_b32 v4, 4, v0
    s_and_b32 s38, s38, 7
    s_add_u32 s38, s38, 1
    s_and_b32 s30, s2, 7
    s_lshr_b32 s31, s2, 5
    s_and_b32 s83, s2, 1
    s_sub_u32 s29, 4, s83
    s_lshr_b32 s28, s30, 1
    s_mul_i32 s28, s28, 7
    s_lshl_b32 s83, s83, 2
    s_add_u32 s39, s28, s83
    s_lshl_b32 s28, s39, 3
    s_mul_i32 s83, s31, s29
    s_add_u32 s28, s28, s83
    s_lshl_b32 s28, s28, 3
    s_mov_b32 s80, 0x05040100
    s_mov_b32 s81, 0x07060302
    """)
    if stamps:
        for i in range(1, 8): a(f"s_mov_b64 s[{86+2*i}:{87+2*i}], 0")
    if opts.get("kearly"):
        a("s_cmp_lg_u32 s3, 3")
        a("s_cbranch_scc1 L_noinit")
        a(f"""
        v_mov_b32 v8, 0
        v_lshlrev_b32 v9, 2, v0
        ds_write_b32 v9, v8 offset:{L_CNT}
        s_waitcnt lgkmcnt(0)
        """)
        a.label("L_noinit")
        a("s_barrier")
    a("s_cmp_ge_u32 s3, 12")
    a("s_cbranch_scc1 L_cw")
    a("s_cmp_ge_u32 s3, 4")
    a("s_cbranch_scc1 L_attn")
    a("s_cmp_eq_u32 s3, 3")
    a("s_cbranch_scc1 L_h3")

    def ws_setup():
        a("s_load_dword s78, s[76:77], 0")
        mk_srd(SW, 76, 0x20000000)

    a("""
    v_and_b32 v5, 1, v1
    v_lshlrev_b32 v5, 10, v5
    v_bfe_u32 v6, v1, 1, 1
    v_lshl_add_u32 v5, v6, 6, v5
    v_lshl_add_u32 v5, v2, 4, v5
    v_lshrrev_b32 v6, 3, v1
    v_lshlrev_b32 v6, 2, v6
    v_add_u32 v6, v6, v2
    v_lshlrev_b32 v6, 3, v6
    v_and_b32 v7, 7, v1
    v_lshlrev_b32 v7, 4, v7
    s_mov_b32 s42, 0
    """)
    a("s_cmp_eq_u32 s3, 0")
    a("s_cbranch_scc0 L_h12")
    W0, T0, ACC, XA, PUB = 16, 80, 16, 112, 100
    def tile_loads(stride, nblk):
        for t in range(nblk):
            a(f"buffer_load_dwordx4 v[{XA+4*t}:{XA+4*t+3}], v5, {srd(SA)}, s83 offen offset:{128*t}")
        for t in range(nblk):
            for e in range(8):
                r = W0 + 4 * (8 * t + e)
                a(f"buffer_load_dwordx4 v[{r}:{r+3}], v8, {srd(SB)}, s82 offen nt")
                if not (t == nblk - 1 and e == 7):
                    a(f"s_add_u32 s82, s82, {stride if e < 7 else 57 * stride}")
    def tile_compute(nblk):
        for t in range(nblk):
            a(f"s_waitcnt vmcnt({8*(nblk-1-t)})")
            transpose(W0 + 32 * t, T0)
            for dd in range(8):
                c = f"v[{ACC+4*dd}:{ACC+4*dd+3}]" if t else "0"
                a(f"v_mfma_f32_16x16x32_bf16 v[{ACC+4*dd}:{ACC+4*dd+3}], v[{XA+4*t}:{XA+4*t+3}], v[{T0+4*dd}:{T0+4*dd+3}], {c}")
        tags_ready()
        for G in range(4):
            b, half = G >> 1, G & 1
            exec_rows(G)
            for m in range(4):
                d = ACC + 4 * (4 * half + m)
                a(f"v_add_f32_dpp v{PUB+m}, v{d+2+b}, v{d+b} row_ror:8 row_mask:0xf bank_mask:0xf")
        exec_all()
    def pub_store(T, mod):
        for m in range(4):
            a(f"v_and_or_b32 v{PUB+m}, v{PUB+m}, v3, s{T+m}")
        exec_set(0x00FF00FF, 0x00FF00FF)
        a(f"buffer_store_dwordx4 v[{PUB}:{PUB+3}], v{PUB+4}, {srd(SW)}, s41 offen {mod}")
        exec_all()
    def pub_restore():
        sk = U("L_nr")
        a("s_cmp_eq_u32 s40, 0")
        a(f"s_cbranch_scc1 {sk}")
        pub_store(TG, "sc1")
        a.label(sk)

    a("""
    v_lshlrev_b32 v8, 13, v6
    v_add_u32 v8, v8, v7
    s_bfe_u32 s84, s2, 0x20003
    s_lshl_b32 s85, s30, 3
    s_add_u32 s85, s85, s31
    s_lshl_b32 s82, s84, 20
    s_lshl_b32 s83, s85, 7
    s_add_u32 s82, s82, s83
    s_lshl_b32 s83, s84, 8
    s_waitcnt lgkmcnt(0)
    """)
    mk_srd(SA, 52, 2048)
    mk_srd(SB, 58, 4194304)
    tile_loads(8192, 2)
    if not opts.get("kearly"): a("s_barrier")
    ws_setup()
    a(f"""
    v_lshrrev_b32 v12, 1, v2
    v_lshlrev_b32 v12, 14, v12
    v_and_b32 v13, 1, v2
    v_lshl_add_u32 v12, v13, 4, v12
    v_lshl_add_u32 v{PUB+4}, v7, 1, v12
    s_lshl_b32 s41, s84, 15
    s_lshl_b32 s83, s85, 8
    s_add_u32 s41, s41, s83
    s_add_u32 s41, s41, {WS_QP}
    s_mov_b32 s40, 1
    """)
    tile_compute(2)
    a(f"v_lshl_add_u32 v{PUB+4}, v7, 1, v12")
    pub_store(TL, "")
    stamp(1)
    lds_add(C_Q, 8)
    a("s_branch L_hrel")

    a.label("L_h12")
    a("""
    s_movk_i32 s82, 3584
    v_mul_lo_u32 v8, v6, s82
    v_add_u32 v8, v8, v7
    s_bfe_u32 s84, s2, 0x30003
    s_lshr_b32 s43, s2, 6
    s_add_u32 s85, s39, s43
    s_mul_i32 s82, s84, 229376
    s_lshl_b32 s83, s85, 7
    s_add_u32 s82, s82, s83
    s_lshl_b32 s83, s84, 7
    s_mov_b32 s40, 0
    s_waitcnt lgkmcnt(0)
    """)
    mk_srd(SA, 52, 2048)
    a(f"""
    s_cmp_eq_u32 s3, 1
    s_cselect_b32 s{SB}, s64, s66
    s_cselect_b32 s{SB+1}, s65, s67
    s_and_b32 s{SB+1}, s{SB+1}, 0xffff
    s_mov_b32 s{SB+2}, 1835008
    s_mov_b32 s{SB+3}, 0x20000
    """)
    a("s_cmp_eq_u32 s3, 1")
    a("s_cbranch_scc1 L_h12a")
    mk_srd(SC, 70, 1024)
    a(f"""
    buffer_load_dwordx4 v[116:119], v4, {srd(SA)}, 0 offen
    buffer_load_dwordx4 v[120:123], v4, {srd(SA)}, 0 offen offset:1024
    buffer_load_dwordx4 v[124:127], v4, {srd(SC)}, 0 offen
    """)
    a.label("L_h12a")
    if opts.get("gu_late", False):
        a("s_barrier")
        ws_setup()
        lds_wait(C_K, 8, 10, sleep=1)
    a("s_cmp_ge_u32 s43, s29")
    a("s_cbranch_scc1 L_h12_skip")
    tile_loads(3584, 1)
    a.label("L_h12_skip")
    if opts.get("gu_late", False):
        lds_add(C_K, 10)
    else:
        if not opts.get("kearly"): a("s_barrier")
        ws_setup()
    a("s_cmp_ge_u32 s43, s29")
    a("s_cbranch_scc1 L_h12_none")
    a(f"""
    v_lshrrev_b32 v12, 1, v2
    v_mul_u32_u24 v12, 7168, v12
    v_and_b32 v13, 1, v2
    v_lshl_add_u32 v12, v13, 4, v12
    s_mul_i32 s41, s84, 14336
    s_lshl_b32 s83, s85, 8
    s_add_u32 s41, s41, s83
    s_sub_u32 s83, s3, 1
    s_lshl_b32 s83, s83, 17
    s_add_u32 s41, s41, s83
    s_add_u32 s41, s41, {WS_GP}
    s_mov_b32 s40, 1
    """)
    tile_compute(1)
    a(f"v_lshl_add_u32 v{PUB+4}, v7, 1, v12")
    pub_store(TL, "")
    stamp(1)
    a("s_branch L_h12_done")
    a.label("L_h12_none")
    a(f"v_mov_b32 v{PUB+4}, 0")
    a(f"s_mov_b32 s41, {WS_STAMP}")
    tags_ready()
    a.label("L_h12_done")
    a("s_cmp_eq_u32 s3, 2")
    a("s_cbranch_scc1 L_ffn")
    lds_add(C_Q, 8)
    a("s_branch L_hrel")

    a.label("L_qgather")
    a(f"""
    s_and_b32 s82, s2, 15
    s_lshl_b32 s82, s82, 11
    s_add_u32 s82, s82, {WS_QP}
    s_add_u32 s83, s82, 32768
    s_add_u32 s84, s82, 65536
    s_add_u32 s85, s82, 98304
    v_mov_b32 v8, 0
    """)
    lds_wait(C_K, opts.get("qn", 4), 10, sleep=1)
    exec_set(1, 0)
    a(f"buffer_load_dword v9, v8, {srd(SW)}, 0 offen offset:256")
    exec_all()
    a("s_waitcnt vmcnt(0)")
    stamp(1)
    qloads = [f"buffer_load_dwordx4 v[{16+8*ks+4*hf}:{19+8*ks+4*hf}], v4, {srd(SW)}, s{82+ks} offen offset:{1024*hf} sc1" for ks in range(4) for hf in range(2)]
    for l in qloads: a(l)
    lds_add(C_G, 8)
    nb = opts.get("qback", 0)
    for bi in range(nb):
        a(f"s_sleep {opts.get('qbs', 16)}")
        for ks in range(4):
            for hf in range(2):
                r = 48 + 32 * bi + 8 * ks + 4 * hf
                a(f"buffer_load_dwordx4 v[{r}:{r+3}], v4, {srd(SW)}, s{82+ks} offen offset:{1024*hf} sc1")
    for bi in range(nb):
        a(f"s_waitcnt vmcnt({8*(nb-bi)})")
        tagcheck([16 + 4 * x for x in range(8)], 8, 9, 10, TL)
        a("s_cbranch_vccz L_qgot")
        a("s_mov_b64 exec, vcc")
        a(f"s_waitcnt vmcnt({8*(nb-bi-1)})")
        for x in range(32): a(f"v_mov_b32 v{16+x}, v{48+32*bi+x}")
    poll(qloads, [16 + 4 * x for x in range(8)], (8, 9, 10, 11, 12), on_timeout=lambda: None, issued=True)
    if nb:
        a.label("L_qgot")
        exec_all()
    for m in range(8):
        a(f"v_add_f32 v{16+m}, v{16+m}, v{24+m}")
        a(f"v_add_f32 v{32+m}, v{32+m}, v{40+m}")
    for m in range(8): a(f"v_add_f32 v{16+m}, v{16+m}, v{32+m}")
    a(f"""
    v_cvt_pk_bf16_f32 v8, v16, v17
    v_cvt_pk_bf16_f32 v9, v18, v19
    v_cvt_pk_bf16_f32 v10, v20, v21
    v_cvt_pk_bf16_f32 v11, v22, v23
    v_lshlrev_b32 v12, 3, v0
    ds_write_b64 v12, v[8:9] offset:{L_Q}
    ds_write_b64 v12, v[10:11] offset:{L_Q+512}
    s_waitcnt lgkmcnt(0)
    """)
    lds_add(C_Q, 8)
    stamp(2)
    a("s_branch L_h3b")
    a.label("L_hrel")
    a("s_cmp_eq_u32 s42, 1")
    a("s_cbranch_scc1 L_fin")
    release_wait(pub_restore, 8)

    a.label("L_ffn")
    lds_add(C_Q, 8)
    a(f"""
    v_and_b32 v8, 7, v0
    v_mul_u32_u24 v8, 14336, v8
    v_lshrrev_b32 v9, 3, v0
    v_lshl_add_u32 v8, v9, 4, v8
    s_lshl_b32 s82, s28, 2
    s_add_u32 s82, s82, {WS_GP}
    s_add_u32 s83, s82, 7168
    s_add_u32 s84, s82, {WS_UP-WS_GP}
    s_add_u32 s85, s84, 7168
    s_waitcnt vmcnt(0)
    v_mov_b32 v14, 0
    v_mov_b32 v15, 0
    """)
    for m in range(4):
        a(f"v_dot2_f32_bf16 v14, v{116+m}, v{124+m}, v14")
        a(f"v_dot2_f32_bf16 v15, v{120+m}, v{124+m}, v15")
    a("s_nop 3")
    rowreduce([14, 15], "v_add_f32")
    xrow_reduce([14, 15], "v_add_f32", [10, 11])
    a("""
    v_mul_f32 v14, 0xbfb8aa3b, v14
    v_mul_f32 v15, 0xbfb8aa3b, v15
    v_exp_f32 v14, v14
    v_exp_f32 v15, v15
    v_add_f32 v14, 1.0, v14
    v_add_f32 v15, 1.0, v15
    v_rcp_f32 v14, v14
    v_rcp_f32 v15, v15
    """)
    for m in range(16): a(f"v_mov_b32 v{16+m}, 0")
    lds_wait(C_G, 1, 10, sleep=2)
    a("s_cmp_eq_u32 s29, 4")
    a("s_cselect_b32 exec_hi, -1, 0xffff")
    poll([f"buffer_load_dwordx4 v[{16+4*x}:{19+4*x}], v8, {srd(SW)}, s{82+x} offen sc1" for x in range(4)],
         [16, 20, 24, 28], (9, 10, 11, 12, 13), on_timeout=pub_restore, slowflag=42)
    for ctl in ("quad_perm:[1,0,3,2]", "quad_perm:[2,3,0,1]", "row_half_mirror"):
        for m in range(16):
            a(f"v_add_f32_dpp v{16+m}, v{16+m}, v{16+m} {ctl} row_mask:0xf bank_mask:0xf")
    for m in range(8): a(f"v_mul_f32 v{32+m}, 0xbfb8aa3b, v{16+m}")
    for m in range(8): a(f"v_exp_f32 v{32+m}, v{32+m}")
    for m in range(8): a(f"v_add_f32 v{32+m}, 1.0, v{32+m}")
    for m in range(8): a(f"v_rcp_f32 v{32+m}, v{32+m}")
    for m in range(8): a(f"v_mul_f32 v{16+m}, v{16+m}, v{24+m}")
    for m in range(8): a(f"v_mul_f32 v{16+m}, v{16+m}, v{32+m}")
    a("v_sub_f32 v10, 1.0, v14")
    a("v_sub_f32 v11, 1.0, v15")
    for m in range(4): a(f"v_mul_f32 v{16+m}, v{16+m}, v10")
    for m in range(4): a(f"v_mul_f32 v{20+m}, v{20+m}, v11")
    a(f"""
    v_lshrrev_b32 v9, 3, v0
    v_lshlrev_b32 v9, 4, v9
    v_mov_b32 v12, 0
    """)
    exec_set(0x01010101, 0x01010101)
    a(f"ds_write_b128 v9, v[16:19] offset:{L_H}")
    a(f"ds_write_b128 v9, v[20:23] offset:{L_H+128}")
    exec_set(1, 0)
    a(f"ds_write_b64 v12, v[14:15] offset:{L_G}")
    exec_all()
    a("s_waitcnt lgkmcnt(0)")
    lds_add(C_H, 8)
    stamp(2)
    a("s_branch L_hrel")

    a.label("L_h3")
    if not opts.get("kearly"):
        a(f"""
        v_lshlrev_b32 v9, 2, v0
        v_mov_b32 v8, 0
        ds_write_b32 v9, v8 offset:{L_CNT}
        s_waitcnt lgkmcnt(0)
        s_barrier
        """)
    else:
        a("s_waitcnt lgkmcnt(0)")
    ws_setup()
    tags_ready()
    a("s_branch L_qgather")
    a.label("L_h3b")
    a("s_cmp_ge_u32 s2, 32")
    a("s_cbranch_scc1 L_fin")
    mk_srd(SC, 72, 2048)
    a("s_waitcnt vmcnt(0)")
    a(f"""
    v_lshrrev_b32 v8, 3, v0
    v_lshlrev_b32 v8, 13, v8
    v_and_b32 v9, 7, v0
    v_lshl_add_u32 v48, v9, 4, v8
    v_add_u32 v49, 4096, v48
    s_lshr_b32 s82, s2, 3
    s_lshl_b32 s82, s82, 16
    s_lshl_b32 s83, s30, 7
    s_add_u32 s82, s82, s83
    s_add_u32 s82, s82, {WS_YP}
    v_lshlrev_b32 v8, 3, v0
    s_bfe_u32 s84, s2, 0x10002
    s_lshl_b32 s84, s84, 10
    s_lshr_b32 s83, s2, 3
    s_lshl_b32 s83, s83, 8
    s_add_u32 s84, s84, s83
    s_and_b32 s83, s2, 3
    s_lshl_b32 s83, s83, 6
    s_add_u32 s84, s84, s83
    s_add_u32 s85, s78, 1
    v_mov_b32 v5, s85
    v_mov_b32 v6, 0
    """)
    if opts.get("ywarm"):
        for i in range(8):
            a(f"buffer_load_dwordx4 v[{16+4*i}:{19+4*i}], v{48+(i>>2)}, {srd(SW)}, s82 offen offset:{1024*(i&3)} sc1")
    lds_wait(C_Y if opts.get("ywait", True) else C_O, 4 if opts.get("ywait", True) else 8, 10, sleep=2)
    stamp(4)
    poll([f"buffer_load_dwordx4 v[{16+4*i}:{19+4*i}], v{48+(i>>2)}, {srd(SW)}, s82 offen offset:{1024*(i&3)} sc1" for i in range(8)],
         [16 + 4 * i for i in range(8)], (9, 10, 11), T=TG)
    stamp(5)
    for st in (4, 2, 1):
        for i in range(st):
            for m in range(4): a(f"v_add_f32 v{16+4*i+m}, v{16+4*i+m}, v{16+4*(i+st)+m}")
    rowreduce([16, 17, 18, 19], "v_add_f32", (8,))
    xrow_reduce([16, 17, 18, 19], "v_add_f32", [20, 21, 22, 23])
    a("v_cvt_pk_bf16_f32 v16, v16, v17")
    a("v_cvt_pk_bf16_f32 v17, v18, v19")
    exec_set(0xFF, 0)
    a(f"buffer_store_dwordx2 v[16:17], v8, {srd(SC)}, s84 offen")
    a("s_cmp_lg_u32 s2, 0")
    a("s_cbranch_scc1 L_noepoch")
    exec_set(1, 0)
    a(f"buffer_store_dword v5, v6, {srd(SW)}, 0 offen sc1")
    a.label("L_noepoch")
    exec_all()
    if opts.get("padto"):
        a(f"s_sub_u32 s32, s32, {opts.get('qat', 330)}")
        wait_until(opts["padto"])
    stamp(7)
    a("s_branch L_fin")

    a.label("L_cw")
    WC, TC, D, PL, AO = 16, 40, 72, 104, 112
    a(f"""
    s_sub_u32 s84, s3, 12
    v_lshlrev_b32 v8, 15, v2
    v_lshl_add_u32 v8, v1, 4, v8
    v_lshlrev_b32 v9, 10, v2
    v_lshl_add_u32 v9, v1, 4, v9
    s_lshl_b32 s82, s30, 2
    s_add_u32 s82, s82, s84
    s_lshl_b32 s82, s82, 17
    s_lshl_b32 s83, s31, 10
    s_add_u32 s82, s82, s83
    s_bfe_u32 s85, s2, 0x20003
    s_lshl_b32 s85, s85, 8
    s_add_u32 s82, s82, s85
    s_lshl_b32 s79, s84, 3
    s_add_u32 s83, s28, s79
    s_lshl_b32 s83, s83, 10
    s_add_u32 s83, s83, s85
    s_waitcnt lgkmcnt(0)
    """)
    mk_srd(SA, 60, 4194304)
    mk_srd(SB, 68, 1835008)
    if not opts.get("kearly"): a("s_barrier")
    ws_setup()
    tags_ready()
    lds_add(C_Q, 10)
    lds_wait(C_V, 8, 10, sleep=4)
    if opts.get("cgo"): lds_wait(C_O, opts["cgo"], 10, sleep=1)
    for e in range(4):
        a(f"buffer_load_dwordx4 v[{WC+4*e}:{WC+4*e+3}], v8, {srd(SA)}, s82 offen nt")
        if e < 3: a("s_add_u32 s82, s82, 8192")
    a(f"buffer_load_dwordx4 v[{WC+16}:{WC+19}], v9, {srd(SB)}, s83 offen nt")
    a("s_add_u32 s83, s83, 4096")
    a(f"buffer_load_dwordx4 v[{WC+20}:{WC+23}], v9, {srd(SB)}, s83 offen nt")
    stamp(1)
    a(f"""
    v_and_b32 v8, 1, v1
    v_lshlrev_b32 v8, 7, v8
    v_lshrrev_b32 v9, 1, v1
    v_add_u32 v8, v8, v9
    v_lshlrev_b32 v8, 11, v8
    v_lshl_add_u32 v9, v2, 4, v8
    s_lshl_b32 s82, s30, 15
    s_lshl_b32 s83, s31, 8
    s_add_u32 s82, s82, s83
    s_lshl_b32 s79, s84, 6
    s_add_u32 s82, s82, s79
    s_add_u32 s82, s82, {WS_OP}
    s_add_u32 s83, s82, 16384
    v_lshrrev_b32 v12, 1, v2
    v_lshlrev_b32 v12, 9, v12
    v_and_b32 v13, 1, v2
    v_lshl_add_u32 v12, v13, 4, v12
    v_lshl_add_u32 v12, v1, 5, v12
    s_lshl_b32 s79, s84, 10
    v_add_u32 v13, s79, v12
    s_bfe_u32 s40, s2, 0x20003
    s_lshl_b32 s40, s40, 6
    s_lshl_b32 s79, s30, 3
    s_add_u32 s40, s40, s79
    s_add_u32 s40, s40, s31
    s_lshl_b32 s40, s40, 10
    s_add_u32 s40, s40, {WS_YP}
    s_mov_b32 s42, 0
    """)
    for dd in range(8): a(f"v_mov_b32 v{TC+4*dd+3}, 0")
    lds_wait(C_H, 1, 10, sleep=4)
    a(f"""
    v_and_b32 v8, 1, v1
    v_lshlrev_b32 v14, 2, v8
    v_lshlrev_b32 v8, 7, v8
    v_lshl_add_u32 v8, v2, 2, v8
    s_lshl_b32 s79, s84, 5
    v_add_u32 v8, s79, v8
    ds_read_b32 v10, v8 offset:{L_H}
    ds_read_b32 v11, v8 offset:{L_H+16}
    ds_read_b32 v118, v14 offset:{L_G}
    v_lshlrev_b32 v8, 3, v2
    s_waitcnt lgkmcnt(0)
    v_cvt_pk_bf16_f32 v{AO+2}, v10, v11
    v_mov_b32 v{AO+3}, 0
    v_mov_b32 v14, 0
    v_mov_b32 v15, 1
    """)
    oloads = [f"buffer_load_dwordx4 v[{PL}:{PL+3}], v9, {srd(SW)}, s82 offen sc1",
              f"buffer_load_dwordx4 v[{PL+4}:{PL+7}], v9, {srd(SW)}, s83 offen sc1"]
    a("s_waitcnt vmcnt(0)")
    stamp(2)
    for l in oloads: a(l)
    transpose(WC, TC, 6)
    poll(oloads, [PL, PL + 4], (5, 6, 7, 10, 11), on_timeout=lambda: None, issued=True, slowflag=42)
    stamp(3)
    for h, x in ((0, 116), (4, 117)):
        a(f"v_bfe_u32 v{x}, v{PL+h}, 8, 2")
        a(f"v_bfe_u32 v5, v{PL+h+1}, 8, 2")
        a(f"v_bfe_u32 v6, v{PL+h+2}, 8, 2")
        a(f"v_bfe_u32 v7, v{PL+h+3}, 8, 2")
        a(f"v_lshl_or_b32 v{x}, v5, 2, v{x}")
        a(f"v_lshl_or_b32 v6, v7, 2, v6")
        a(f"v_lshl_or_b32 v{x}, v6, 4, v{x}")
        a(f"v_lshlrev_b32 v{x}, v8, v{x}")
    xrow_reduce([116, 117], "v_or_b32", [5, 6])
    a("v_max_f32 v5, v116, v117")
    rowreduce([5], "v_max_f32", (8, 4, 2))
    a(f"""
    v_sub_f32 v116, v116, v5
    v_sub_f32 v117, v117, v5
    v_exp_f32 v116, v116
    v_exp_f32 v117, v117
    v_add_f32 v6, v116, v117
    """)
    for m in range(4): a(f"v_mul_f32 v{PL+m}, v116, v{PL+m}")
    for m in range(4): a(f"v_fmac_f32 v{PL+m}, v117, v{PL+4+m}")
    rowreduce([6, PL, PL + 1, PL + 2, PL + 3], "v_add_f32", (8, 4, 2))
    a("v_rcp_f32 v6, v6")
    a("v_mul_f32 v6, v6, v118")
    for m in range(4): a(f"v_mul_f32 v{PL+m}, v6, v{PL+m}")
    a(f"v_cvt_pk_bf16_f32 v{AO}, v{PL}, v{PL+1}")
    a(f"v_cvt_pk_bf16_f32 v{AO+1}, v{PL+2}, v{PL+3}")
    stamp(4)
    for dd in range(8):
        a(f"v_mfma_f32_16x16x32_bf16 v[{D+4*dd}:{D+4*dd+3}], v[{AO}:{AO+3}], v[{TC+4*dd}:{TC+4*dd+3}], 0")
    for G in (0, 2, 1, 3):
        b, half = G >> 1, G & 1
        exec_rows(G)
        for m in range(4):
            a(f"v_mov_b32 v{16+m}, v{D+4*(4*half+m)+b}")
    exec_all()
    a(f"ds_write_b128 v13, v[16:19] offset:{L_Y}")
    exec_set(1, 0)
    a(f"ds_add_rtn_u32 v15, v14, v15 offset:{C_Y}")
    exec_all()
    for x in range(4):
        a(f"ds_read_b128 v[{20+4*x}:{23+4*x}], v12 offset:{L_Y+1024*x}")
    a("s_waitcnt lgkmcnt(4)")
    a("v_readfirstlane_b32 s79, v15")
    stamp(5)
    a("s_cmp_lg_u32 s79, 3")
    a("s_cbranch_scc1 L_crel")
    a("s_waitcnt lgkmcnt(0)")
    for m in range(4):
        a(f"v_add_f32 v{20+m}, v{20+m}, v{24+m}")
        a(f"v_add_f32 v{28+m}, v{28+m}, v{32+m}")
    for m in range(4): a(f"v_add_f32 v{20+m}, v{20+m}, v{28+m}")
    for m in range(4): a(f"v_and_or_b32 v{20+m}, v{20+m}, v3, s{TG+m}")
    a(f"buffer_store_dwordx4 v[20:23], v12, {srd(SW)}, s40 offen sc1")
    stamp(6)
    a.label("L_crel")
    a("s_cmp_eq_u32 s42, 1")
    a("s_cbranch_scc1 L_fin")
    lds_op("ds_max_u32", C_REL, 1, 5)
    a("s_branch L_fin")

    a.label("L_attn")
    KR, VR, QB, SR, PR, FAC = 16, 48, 80, 96, 104, 108
    a("""
    s_sub_u32 s84, s3, 4
    s_and_b32 s82, s2, 15
    s_lshr_b32 s83, s2, 4
    s_lshl_b32 s85, s82, 4
    s_add_u32 s85, s85, s83
    s_lshl_b32 s82, s82, 23
    s_add_u32 s82, s82, 0x700000
    s_lshl_b32 s83, s83, 16
    s_add_u32 s82, s82, s83
    s_lshl_b32 s83, s84, 13
    s_add_u32 s82, s82, s83
    s_add_u32 s83, s82, 4096
    v_lshlrev_b32 v5, 8, v1
    v_lshl_add_u32 v5, v2, 4, v5
    v_lshlrev_b32 v6, 10, v2
    v_lshl_add_u32 v6, v1, 4, v6
    s_waitcnt lgkmcnt(0)
    """)
    mk_srd(SA, 54, 134217728)
    mk_srd(SB, 56, 134217728)
    if not opts.get("kearly"): a("s_barrier")
    for T in range(2):
        for jj in range(4):
            r = KR + 4 * (4 * T + jj)
            a(f"buffer_load_dwordx4 v[{r}:{r+3}], v5, {srd(SA)}, s{82+T} offen offset:{64*jj} nt")
    lds_add(C_K, 8)
    ws_setup()
    lds_wait(C_K, 10 if opts.get("gu_late", False) else 8, 8, sleep=1)
    if opts.get("vgate", 8) < 8:
        a(f"s_cmp_lt_u32 s84, {opts['vgate']}")
        a("s_cbranch_scc1 L_vgo")
        lds_wait(C_G, 1, 8, sleep=1)
        a.label("L_vgo")
    for e in range(8):
        r = VR + 4 * e
        a(f"buffer_load_dwordx4 v[{r}:{r+3}], v6, {srd(SB)}, s{82+(e>>2)} offen offset:{256*(e&3)} nt")
    lds_add(C_V, 8)
    stamp(1)
    tags_ready()
    a(f"""
    v_and_b32 v6, 3, v1
    v_lshlrev_b32 v6, 8, v6
    v_lshl_add_u32 v6, v2, 4, v6
    s_mov_b32 s42, 0
    v_lshlrev_b32 v13, 6, v1
    v_lshl_add_u32 v13, v2, 4, v13
    s_lshl_b32 s79, s84, 11
    v_add_u32 v13, s79, v13
    v_lshlrev_b32 v5, 2, v0
    s_lshl_b32 s79, s84, 8
    v_add_u32 v5, s79, v5
    v_mov_b32 v7, 0xfffffc00
    s_lshl_b32 s41, s85, 11
    s_add_u32 s41, s41, {WS_OP}
    v_and_b32 v14, 3, v0
    v_lshlrev_b32 v14, 3, v14
    v_lshrrev_b32 v15, v14, s37
    v_lshrrev_b32 v14, v14, s36
    v_and_b32 v14, 0xff, v14
    v_and_b32 v15, 0xff, v15
    """)
    lds_wait(C_Q, 8, 8, sleep=2)
    stamp(2)
    for jj in range(4):
        a(f"ds_read_b128 v[{QB+4*jj}:{QB+4*jj+3}], v6 offset:{L_Q+64*jj}")
    a("s_waitcnt vmcnt(8) lgkmcnt(0)")
    stamp(3)
    for jj in range(4):
        for T in range(2):
            c = f"v[{SR+4*T}:{SR+4*T+3}]" if jj else "0"
            r = KR + 4 * (4 * T + jj)
            a(f"v_mfma_f32_16x16x32_bf16 v[{SR+4*T}:{SR+4*T+3}], v[{r}:{r+3}], v[{QB+4*jj}:{QB+4*jj+3}], {c}")
    a("s_mov_b32 s79, 0x3e0293ee")
    for x in range(8): a(f"v_mul_f32 v{SR+x}, s79, v{SR+x}")
    a(f"v_max3_f32 v8, v{SR}, v{SR+1}, v{SR+2}")
    a(f"v_max3_f32 v8, v8, v{SR+3}, v{SR+4}")
    a(f"v_max3_f32 v8, v8, v{SR+5}, v{SR+6}")
    a(f"v_max_f32 v8, v8, v{SR+7}")
    xrow_reduce([8], "v_max_f32", [10])
    for x in range(8): a(f"v_sub_f32 v{SR+x}, v{SR+x}, v8")
    for x in range(8): a(f"v_exp_f32 v{SR+x}, v{SR+x}")
    a(f"v_add_f32 v9, v{SR}, v{SR+1}")
    for x in range(2, 8): a(f"v_add_f32 v9, v9, v{SR+x}")
    for x in range(4): a(f"v_cvt_pk_bf16_f32 v{PR+x}, v{SR+2*x}, v{SR+2*x+1}")
    xrow_reduce([9], "v_add_f32", [10])
    a(f"""
    v_lshlrev_b32 v10, 3, v0
    s_lshl_b32 s79, s84, 5
    v_add_u32 v10, s79, v10
    """)
    exec_set(0xF, 0)
    a(f"ds_write_b64 v10, v[8:9] offset:{L_ML}")
    exec_all()
    a("s_waitcnt lgkmcnt(0)")
    lds_add(C_ML, 10)
    def factors():
        a("v_lshlrev_b32 v8, 3, v2")
        for x in range(8):
            a(f"ds_read_b64 v[{QB+2*x}:{QB+2*x+1}], v8 offset:{L_ML+32*x}")
        a("s_waitcnt lgkmcnt(0)")
        a(f"v_max3_f32 v9, v{QB}, v{QB+2}, v{QB+4}")
        a(f"v_max3_f32 v9, v9, v{QB+6}, v{QB+8}")
        a(f"v_max3_f32 v9, v9, v{QB+10}, v{QB+12}")
        a(f"v_max_f32 v9, v9, v{QB+14}")
        for x in range(8): a(f"v_sub_f32 v{FAC+x}, v{QB+2*x}, v9")
        for x in range(8): a(f"v_exp_f32 v{FAC+x}, v{FAC+x}")
        a(f"v_mul_f32 v117, v{FAC}, v{QB+1}")
        for x in range(1, 8): a(f"v_fmac_f32 v117, v{FAC+x}, v{QB+2*x+1}")
        a("""
        v_log_f32 v116, v117
        v_rcp_f32 v117, v117
        v_add_f32 v116, v116, v9
        v_lshlrev_b32 v8, 1, v1
        v_lshrrev_b32 v116, v8, v116
        v_and_b32 v116, 3, v116
        v_lshl_or_b32 v116, v116, 8, v14
        s_mov_b32 s42, 1
        """)
        for x in range(8): a(f"v_mul_f32 v{FAC+x}, v{FAC+x}, v117")
    lds_wait(C_ML, 8, 10, sleep=1)
    factors()
    a("v_mov_b32 v10, 0")
    a("v_mov_b32 v11, 1")
    for m in range(3):
        a(f"s_waitcnt vmcnt({6-2*m})")
        perm_pair(VR, KR, m)
    a("s_waitcnt vmcnt(0)")
    stamp(4)
    OD = [VR + 4 * dd for dd in range(6)] + [120, 124]
    def pm(p, hi): a(f"v_perm_b32 v{KR+4*(2*p+hi)+3}, v{VR+28+p}, v{VR+24+p}, s{S_SELHI if hi else S_SELLO}")
    def mf(dd): a(f"v_mfma_f32_16x16x32_bf16 v[{OD[dd]}:{OD[dd]+3}], v[{KR+4*dd}:{KR+4*dd+3}], v[{PR}:{PR+3}], 0")
    pm(0, 0); pm(0, 1); pm(1, 0); pm(1, 1)
    mf(0); pm(2, 0); mf(1); pm(2, 1); mf(2); pm(3, 0); mf(3); pm(3, 1)
    exec_set(0x000F000F, 0x000F000F)
    mf(4); mf(5); mf(6); mf(7)
    for dd in range(8):
        a(f"ds_write_b128 v13, v[{OD[dd]}:{OD[dd]+3}] offset:{L_O+256*dd}")
    exec_set(1, 0)
    a(f"ds_add_u32 v10, v11 offset:{C_O}")
    exec_all()
    stamp(5)
    lds_wait(C_O, 8, 8)
    stamp(6)
    for x in range(8):
        a(f"ds_read_b32 v{QB+x}, v5 offset:{L_O+2048*x}")
    for x in range(8):
        a(f"s_waitcnt lgkmcnt({7-x})" if not stamps else "s_waitcnt lgkmcnt(0)")
        if x == 0: a(f"v_mul_f32 v12, v{FAC}, v{QB}")
        else: a(f"v_fmac_f32 v12, v{FAC+x}, v{QB+x}")
    a("v_and_or_b32 v12, v12, v7, v116")
    a(f"buffer_store_dword v12, v5, {srd(SW)}, s41 offen")
    stamp(7)
    def o_restore():
        a("v_and_or_b32 v12, v12, v3, v15")
        a(f"buffer_store_dword v12, v5, {srd(SW)}, s41 offen sc1")
    release_wait(o_restore, 10)

    for c in cold: c()

    a.label("L_fin")
    if stamps:
        a(f"""
        s_waitcnt lgkmcnt(0) vmcnt(0)
        s_lshl_b32 s82, s2, 4
        s_add_u32 s82, s82, s3
        s_lshl_b32 s82, s82, 6
        s_add_u32 s82, s82, {WS_STAMP}
        v_mov_b32 v4, 0
        """)
        for i in range(16): a(f"v_mov_b32 v{16+i}, s{86+i}")
        exec_set(1, 0)
        for i in range(4):
            a(f"buffer_store_dwordx4 v[{16+4*i}:{19+4*i}], v4, {srd(SW)}, s82 offen offset:{16*i}")
    a.label("L_end")
    a("s_endpgm")
    R('.section .rodata,"a"')
    R(".p2align 6")
    R(f".amdhsa_kernel {NAME}_kernel")
    R("  .amdhsa_next_free_vgpr 128")
    R("  .amdhsa_next_free_sgpr 102")
    R("  .amdhsa_accum_offset 128")
    R("  .amdhsa_group_segment_fixed_size 0")
    R("  .amdhsa_kernarg_size 104")
    R("  .amdhsa_user_sgpr_count 2")
    R("  .amdhsa_user_sgpr_kernarg_segment_ptr 1")
    R("  .amdhsa_system_sgpr_workgroup_id_x 1")
    R(".end_amdhsa_kernel")
    return a.text()

if __name__ == "__main__":
    variants = {
        "zf": dict(qn=3, ywarm=True),
        "zh1": dict(qn=3, ywarm=True, qback=1),
        "zh2": dict(qn=2, ywarm=True, qback=2),
        "zh3": dict(qn=3, ywarm=True, qback=1, qbs=24),
        "zh4": dict(qn=3, ywarm=True, qback=2, qbs=20),
        "zhp": dict(qn=3, ywarm=True, qback=1, perm=1),
    }
    for n, o in variants.items():
        open(f"work/{n}.s", "w").write(gen(False, o))
        open(f"work/{n}s.s", "w").write(gen(True, o))
```
